```python
import torch

def _softmax(x, axis=-1):
    return torch.softmax(x, dim=axis)
def _gelu(x):
    return torch.nn.functional.gelu(x, approximate="tanh")
def _silu(x):
    return torch.nn.functional.silu(x)
def _sigmoid(x):
    return torch.sigmoid(x)
def _layernorm(x, axis=-1, eps=1e-5):
    m = x.mean(dim=axis, keepdim=True)
    v = x.var(dim=axis, keepdim=True, unbiased=False)
    return (x - m) / torch.sqrt(v + eps)
def _scatter_add(tgt, idx, src, axis=0):
    return tgt.clone().index_add_(axis, idx, src)
def _segment_sum(src, seg, n):
    out = torch.zeros((n,) + src.shape[1:], dtype=src.dtype)
    return out.index_add_(0, seg, src)
def _pad(x, pw):
    flat = tuple(v for pair in reversed(pw) for v in pair)
    return torch.nn.functional.pad(x, flat)

kernel_name = 'parallel_sum__softmax_full_mha__dense_activation_silu__prompt'

def setup_inputs():

    _w = (lambda a: (lambda t: t.to(torch.bfloat16) if t.is_floating_point() else t)(torch.as_tensor(a)))
    def _A_setup():
        B, S, D = 1, 2048, 1024
        return {
            "x": _w((lambda *s: torch.randn(*s, dtype=torch.bfloat16) * 0.05)(B, S, D)),
            "wqkv": _w((lambda *s: torch.randn(*s, dtype=torch.bfloat16) * 0.05)(D, 3 * D)),
            "wo": _w((lambda *s: torch.randn(*s, dtype=torch.bfloat16) * 0.05)(D, D)),
        }
    _A_in = _A_setup()

    def _B_setup():
        B, S, D, F = 1, 2048, 1024, 3584
        return {
            "x": _w((lambda *s: torch.randn(*s, dtype=torch.bfloat16) * 0.05)(B, S, D)),
            "w1": _w((lambda *s: torch.randn(*s, dtype=torch.bfloat16) * 3.2)(D, F) * (D ** -0.5)),
            "w2": _w((lambda *s: torch.randn(*s, dtype=torch.bfloat16) * 0.4)(F, D) * (F ** -0.5)),
        }
    _B_in = _B_setup()

    return {
        "A_x": _A_in["x"],
        "A_wqkv": _A_in["wqkv"],
        "A_wo": _A_in["wo"],
        "B_x": _B_in["x"],
        "B_w1": _B_in["w1"],
        "B_w2": _B_in["w2"],
    }

def reference(A_x, A_wqkv, A_wo, B_x, B_w1, B_w2):
    def _A_ref(x, wqkv, wo):
        B, S, D = x.shape
        H = 32; Dh = D // H
        qkv = (lambda x, *d: x.permute(*d))((x @ wqkv).reshape(B, S, 3, H, Dh), 2, 0, 3, 1, 4)
        q, k, v = qkv[0], qkv[1], qkv[2]
        scale = Dh ** -0.5
        scores = torch.einsum("bhqd,bhkd->bhqk", q, k) * scale
        p = _softmax(scores, axis=-1)
        o = torch.einsum("bhqk,bhkd->bhqd", p, v)
        return (lambda x, *d: x.permute(*d))(o, 0, 2, 1, 3).reshape(B, S, D) @ wo

    def _B_ref(x, w1, w2):
        h = torch.einsum("bsd,df->bsf", x, w1)
        h = _silu(h)
        out = torch.einsum("bsf,fd->bsd", h, w2)
        return out

    x = A_x
    xn = _layernorm(x, axis=-1)
    return x + _A_ref(xn, A_wqkv, A_wo) + _B_ref(xn, B_w1, B_w2)
```

```python
import sys, importlib
sys.path.insert(0, "cdna_kernels")
from genlib import *
from asmutil import assemble, metadata
import re
HEADER = """; MHA + SiLU-FFN block, hand-scheduled for gfx950 (generated by a python emitter written for this task)
"""
def build(kernels, out, final=None):
    txt = ""
    for name, a, grid, block, lds, vg in kernels:
        txt += f"; @launch kernel={name} grid=({grid},1,1) block=({block},1,1) lds={lds}\n"
    txt += '.amdgcn_target "amdgcn-amd-amdhsa--gfx950"\n'
    seen = set()
    for name, a, grid, block, lds, vg in kernels:
        if name in seen: continue
        seen.add(name)
        txt += a.text()
        txt += ".text\n"
    if final:
        open(final, "w").write(txt)
    meta = []
    seen = set()
    for name, a, grid, block, lds, vg in kernels:
        if name in seen: continue
        seen.add(name)
        meta.append((name, 102, vg, block))
    assemble(txt + metadata(meta, 9), out + ".co")
    import json
    json.dump([dict(name=n, grid=g, block=b, lds=l) for n, a, g, b, l, v in kernels], open(out + ".json", "w"))
```

```python
class Asm:
    def __init__(self):
        self.lines = []
    def __call__(self, s):
        for ln in s.split("\n"):
            ln = ln.strip()
            if ln:
                if ln.endswith(":") or ln.startswith("."):
                    self.lines.append(ln)
                else:
                    self.lines.append("    " + ln)
    def c(self, s):
        self.lines.append("    ; " + s)
    def raw(self, s):
        self.lines.append(s)
    def ext(self, other):
        self.lines += other.lines
    def text(self):
        return "\n".join(self.lines) + "\n"

def vr(b, n=1):
    return f"v{b}" if n == 1 else f"v[{b}:{b+n-1}]"
def ar(b, n=1):
    return f"a{b}" if n == 1 else f"a[{b}:{b+n-1}]"
def sr(b, n=1):
    return f"s{b}" if n == 1 else f"s[{b}:{b+n-1}]"

def srd(a, dst, ptr_lo, size, off=0, tmp_scc=True):
    if off:
        a(f"s_add_u32 s{dst}, s{ptr_lo}, {off}")
        a(f"s_addc_u32 s{dst+1}, s{ptr_lo+1}, 0")
    else:
        a(f"s_mov_b32 s{dst}, s{ptr_lo}")
        a(f"s_mov_b32 s{dst+1}, s{ptr_lo+1}")
    a(f"s_mov_b32 s{dst+2}, {size}")
    a(f"s_mov_b32 s{dst+3}, 0x00020000")

def kernel_header(a, name):
    a.raw(".text")
    a.raw(f".globl {name}")
    a.raw(".p2align 8")
    a.raw(f".type {name},@function")
    a.raw(f"{name}:")

def kernel_desc(a, name, vgpr, acc, sgpr=102):
    a.raw('.section .rodata,"a"')
    a.raw(".p2align 6")
    a.raw(f".amdhsa_kernel {name}")
    a.raw(f"  .amdhsa_next_free_vgpr {vgpr}")
    a.raw(f"  .amdhsa_next_free_sgpr {sgpr}")
    a.raw(f"  .amdhsa_accum_offset {acc}")
    a.raw("  .amdhsa_group_segment_fixed_size 0")
    a.raw("  .amdhsa_kernarg_size 72")
    a.raw("  .amdhsa_user_sgpr_count 2")
    a.raw("  .amdhsa_user_sgpr_kernarg_segment_ptr 1")
    a.raw("  .amdhsa_system_sgpr_workgroup_id_x 1")
    a.raw("  .amdhsa_float_denorm_mode_32 3")
    a.raw(".end_amdhsa_kernel")

WS_STAMP = 48 << 20
class Stamps:
    def __init__(self, on): self.on = on; self.n = 0; self.names = []
    def __call__(self, a, name):
        if not self.on: return
        k = self.n; self.n += 1; self.names.append(name)
        assert k < 14
        a(f"s_memtime s[{64+2*k}:{65+2*k}]")
    def real(self, a, which):
        if not self.on: return
        a(f"s_memrealtime s[{92+2*which}:{93+2*which}]")
    def flush(self, a, wave_sreg, wsptr=28, kid=0):
        if not self.on: return
        a("s_waitcnt lgkmcnt(0)")
        a(f"s_add_u32 s40, s{wsptr}, {WS_STAMP + kid*65536*4}")
        a(f"s_addc_u32 s41, s{wsptr+1}, 0")
        a("s_mov_b32 s42, 0x40000")
        a("s_mov_b32 s43, 0x00020000")
        a("s_lshl_b32 s44, s2, 3")
        a(f"s_add_u32 s44, s44, s{wave_sreg}")
        a("s_lshl_b32 s44, s44, 6")
        a("v_mov_b32 v1, s44")
        a("s_mov_b64 exec, 1")
        for k in range(self.n):
            a(f"v_mov_b32 v2, s{64+2*k}")
            a(f"buffer_store_dword v2, v1, s[40:43], 0 offen offset:{4*k}")
            a("s_nop 0")
        a("v_mov_b32 v2, s92")
        a("buffer_store_dword v2, v1, s[40:43], 0 offen offset:56")
        a("s_nop 0")
        a("v_mov_b32 v2, s94")
        a("buffer_store_dword v2, v1, s[40:43], 0 offen offset:60")
        a("s_mov_b64 exec, -1")
```

```python
from genlib import *
from layout import *

SA, SB = 16, 32
NA_, NB_ = 48, 64
PA, PB = 80, 88
ONES = 96
KF, VF, QF = 0, 8, 16
OA, OB = 32, 48
LA, LB = 64, 68
SLOT = 32768
NBLK = 8

def wg_decode(a):
    a("v_lshrrev_b32 v1, 6, v0")
    a("v_and_b32 v0, 63, v0")
    a("s_and_b32 s26, s2, 7")
    a("v_readfirstlane_b32 s24, v1")
    a("s_lshr_b32 s25, s2, 3")
    a("s_and_b32 s3, s25, 3")
    a("s_lshr_b32 s25, s25, 2")
    a("s_lshl_b32 s26, s26, 1")
    a("s_and_b32 s30, s3, 1")
    a("s_add_u32 s26, s26, s30")
    a("s_lshr_b32 s3, s3, 1")
    a("s_lshl_b32 s3, s3, 4")
    a("s_add_u32 s26, s26, s3")

def m32(d, A, B, C, dt="v"):
    c = C if isinstance(C, str) else f"{dt}[{C}:{C+15}]"
    return f"v_mfma_f32_32x32x16_bf16 {dt}[{d}:{d+15}], {A}, {B}, {c}"

def s_mfma(S, Q, NEG, uu):
    if uu == 0:
        return m32(S, f"a[{KF}:{KF+3}]", f"a[{Q}:{Q+3}]", NEG if isinstance(NEG, str) else NEG)
    return m32(S, f"a[{KF+4}:{KF+7}]", f"a[{Q+4}:{Q+7}]", S)
def pv_mfma(O, P, uu):
    return m32(O, f"a[{VF+4*uu}:{VF+4*uu+3}]", f"v[{P+4*uu}:{P+4*uu+3}]", O, "a")
def l_mfma(L, P, uu):
    return f"v_mfma_f32_16x16x32_bf16 a[{L}:{L+3}], v[{ONES}:{ONES+3}], v[{P+4*uu}:{P+4*uu+3}], a[{L}:{L+3}]"

def phase(a, SX, PX, SY, QY, NY, OY, LY, PY, lds_after2, lds_after4, wait1=None, wait3=None, extra=None, var=''):
    extra = extra or {}
    e = lambda i: a(f"v_exp_f32 v{SX+i}, v{SX+i}")
    c = lambda i: a(f"v_cvt_pk_bf16_f32 v{PX+i}, v{SX+2*i}, v{SX+2*i+1}")
    def ex(p):
        for ln in extra.get(p, []): a(ln)
    if wait1: a(wait1)
    a(s_mfma(SY, QY, NY, 0)); ex(0)
    e(0); e(1); e(2)
    a(s_mfma(SY, QY, NY, 1))
    e(3)
    for ln in lds_after2: a(ln)
    e(4); e(5)
    if wait3: a(wait3)
    a(pv_mfma(OY, PY, 0)); ex(1)
    e(6); e(7); c(0); c(1)
    a(pv_mfma(OY, PY, 1))
    e(8)
    for ln in lds_after4: a(ln)
    e(9); c(2); c(3)
    if 'nol' not in var.split(','): a(l_mfma(LY, PY, 0))
    ex(2)
    e(10); e(11)
    if 'nol' not in var.split(','): a(l_mfma(LY, PY, 1))
    e(12); e(13); c(4); e(14); e(15); c(5); c(6); c(7)

def kread(base, off):
    return [f"ds_read_b128 a[{KF}:{KF+3}], v{base} offset:{off}", f"ds_read_b128 a[{KF+4}:{KF+7}], v{base} offset:{off+1024}"]
def vread(base, off):
    return [f"ds_read_b128 a[{VF}:{VF+3}], v{base} offset:{off}", f"ds_read_b128 a[{VF+4}:{VF+7}], v{base} offset:{off+1024}"]

def dma_ops():
    ops = []
    for kv in range(2):
        for n in range(4):
            g = []
            if n == 0: g += [f"s_add_u32 m0, s33, {kv*16384}", "s_nop 0"]
            g.append(f"buffer_load_dwordx4 v3, s[{8+4*kv}:{11+4*kv}], s34 offen offset:{n*1024} lds")
            ops.append(g)
    return ops

def att_body(a, name, st, var=''):
    a("s_lshl_b32 s3, s26, 17")
    a(f"s_add_u32 s8, s28, {WS_K}")
    a("s_addc_u32 s9, s29, 0")
    a("s_add_u32 s8, s8, s3")
    a("s_addc_u32 s9, s9, 0")
    a("s_mov_b32 s10, 131072")
    a("s_mov_b32 s11, 0x00020000")
    a(f"s_add_u32 s12, s28, {WS_V}")
    a("s_addc_u32 s13, s29, 0")
    a("s_add_u32 s12, s12, s3")
    a("s_addc_u32 s13, s13, 0")
    a("s_mov_b32 s14, 131072")
    a("s_mov_b32 s15, 0x00020000")
    srd(a, 16, 28, 4 * MB, WS_Q)
    srd(a, 20, 28, 4 * MB, WS_O)
    a("v_lshlrev_b32 v1, 4, v0")
    a("s_lshl_b32 s30, s24, 12")
    a("v_add_u32 v3, s30, v1")
    a("s_lshl_b32 s31, s25, 3")
    a("s_lshl_b32 s32, s24, 1")
    a("s_add_u32 s31, s31, s32")
    a("s_lshl_b32 s32, s31, 11")
    a("s_add_u32 s32, s32, s3")
    for qt in range(2):
        for uu in range(2):
            r = QF + 8 * qt + 4 * uu
            a(f"buffer_load_dwordx4 a[{r}:{r+3}], v1, s[16:19], s32 offen offset:{qt*2048+uu*1024}")
    a("s_mov_b32 s35, s30")
    for sgi in range(2):
        a(f"s_add_u32 s33, s35, {sgi*SLOT}")
        a(f"s_mov_b32 s34, {sgi*16384}")
        for g in dma_ops():
            for ln in g:
                a(ln)
    a("v_and_b32 v4, 3, v0")
    a("v_bfe_u32 v5, v0, 2, 1")
    a("v_bfe_u32 v6, v0, 4, 1")
    a("v_xor_b32 v5, v5, v6")
    a("v_or_b32 v4, v4, v5")
    a("v_cmp_eq_u32 vcc, 0, v4")
    a("v_mov_b32 v5, 0x3f803f80")
    a("s_nop 0")
    for k in range(4):
        a(f"v_cndmask_b32 v{ONES+k}, 0, v5, vcc")
    for r in list(range(OA, OA + 32)) + list(range(LA, LA + 8)) + list(range(VF, VF + 8)):
        a(f"v_accvgpr_write_b32 a{r}, 0")
    for r in range(PB, PB + 8):
        a(f"v_mov_b32 v{r}, 0")
    a("v_mov_b32 v4, v1")
    a(f"v_add_u32 v5, {SLOT}, v1")
    a("s_waitcnt vmcnt(0)")
    a("s_barrier")
    st(a, "loaded")
    for ln in kread(4, 0): a(ln)
    a("s_waitcnt lgkmcnt(0)")
    a(s_mfma(SA, QF, "0", 0)); a(s_mfma(SA, QF, "0", 1))
    a(s_mfma(SB, QF + 8, "0", 0)); a(s_mfma(SB, QF + 8, "0", 1))
    a("s_nop 15")
    for S, N in ((SA, NA_), (SB, NB_)):
        a(f"v_max3_f32 v6, v{S}, v{S+1}, v{S+2}")
        for k in range(3, 15, 2):
            a(f"v_max3_f32 v6, v6, v{S+k}, v{S+k+1}")
        a(f"v_max_f32 v6, v6, v{S+15}")
        a("v_mov_b32 v7, v6")
        a("s_nop 1")
        a("v_permlane32_swap_b32 v6, v7")
        a("s_nop 1")
        a("v_max_f32 v6, v6, v7")
        a("v_xor_b32 v6, 0x80000000, v6")
        for k in range(16):
            a(f"v_mov_b32 v{N+k}, v6")
    a("s_nop 1")
    a(s_mfma(SA, QF, NA_, 0)); a(s_mfma(SA, QF, NA_, 1))
    a("s_nop 15")
    a("s_mov_b32 s36, 0")
    a(f"s_mov_b32 s37, {2*SLOT}")
    a(f"s_mov_b32 s38, {SLOT}")
    a("s_mov_b32 s34, 32768")
    st(a, "prolog")
    a.raw(f"{name}_stage:")
    a("s_waitcnt vmcnt(0)")
    a("s_barrier")
    a("s_add_u32 s33, s35, s37")
    a("s_cmp_lt_u32 s36, 6")
    a("s_cselect_b32 s10, 131072, 0")
    a("s_cselect_b32 s14, 131072, 0")
    ops = dma_ops()
    for b in range(NBLK):
        exA, exB = {}, {}
        if b < 4 and 'nodma' not in var:
            exA[1] = ops[2 * b]
            exB[1] = ops[2 * b + 1]
        nk = kread(4, (b + 1) * 2048) if b < NBLK - 1 else kread(5, 0)
        nv = vread(4, 16384 + b * 2048)
        w1, w3 = "s_waitcnt lgkmcnt(2)", "s_waitcnt lgkmcnt(0)"
        if 'nolds' in var: nk, nv, w1, w3 = [], [], None, None
        if 'nowait' in var: w1, w3 = None, None
        phase(a, SA, PA, SB, QF + 8, NB_, OB, LB, PB, nk, nv, extra=exA, var=var)
        phase(a, SB, PB, SA, QF, NA_, OA, LA, PA, [], [], wait1=w1, wait3=w3, extra=exB, var=var)
    a("v_mov_b32 v4, v5")
    a("s_mov_b32 s39, s37")
    a(f"s_add_u32 s37, s37, {SLOT}")
    a(f"s_cmp_ge_u32 s37, {3*SLOT}")
    a("s_cselect_b32 s37, 0, s37")
    a("v_add_u32 v5, s39, v1")
    a("s_add_u32 s34, s34, 16384")
    a("s_add_u32 s36, s36, 1")
    a("s_cmp_lt_u32 s36, 8")
    a(f"s_cbranch_scc1 {name}_stage")
    st(a, "loop")
    a(pv_mfma(OB, PB, 0)); a(pv_mfma(OB, PB, 1))
    a(l_mfma(LB, PB, 0)); a(l_mfma(LB, PB, 1))
    a("s_nop 15")
    a("s_nop 7")

def att_epilogue(a, name, sc=""):
    a("s_lshl_b32 s32, s31, 16")
    a("s_lshl_b32 s3, s26, 11")
    a("s_add_u32 s32, s32, s3")
    a("s_add_u32 s33, s32, 65536")
    for qt, (O, L) in enumerate(((OA, LA), (OB, LB))):
        a(f"v_accvgpr_read_b32 v6, a{L}")
        a("s_nop 0")
        a("v_rcp_f32 v7, v6")
        for k in range(16):
            a(f"v_accvgpr_read_b32 v{16+k}, a{O+k}")
        for k in range(16):
            a(f"v_mul_f32 v{16+k}, v{16+k}, v7")
        for k in range(8):
            a(f"v_cvt_pk_bf16_f32 v{32+8*qt+k}, v{16+2*k}, v{17+2*k}")
        so = "s32" if qt == 0 else "s33"
        for uu in range(2):
            r = 32 + 8 * qt + 4 * uu
            a(f"buffer_store_dwordx4 v[{r}:{r+3}], v1, s[20:23], {so} offen offset:{uu*1024} {sc}")

def gen_att(name="att_kernel", stamps=False, sc="", var=""):
    a = Asm()
    st = Stamps(stamps)
    kernel_header(a, name)
    a("s_cmp_ge_u32 s2, 256")
    a(f"s_cbranch_scc1 {name}_end")
    st.real(a, 0); st(a, "start")
    a("s_load_dwordx2 s[28:29], s[0:1], 64")
    wg_decode(a)
    a("s_waitcnt lgkmcnt(0)")
    att_body(a, name, st, var)
    att_epilogue(a, name, sc)
    st(a, "epi")
    a("s_waitcnt vmcnt(0)")
    st(a, "drain"); st.real(a, 1)
    st.flush(a, 24, kid=1)
    a("s_waitcnt vmcnt(0)")
    a.raw(f"{name}_end:")
    a("s_endpgm")
    kernel_desc(a, name, 512, 256)
    return a
```

```python
from genlib import *
from layout import *

STAGE = 13312
ACC0 = 48
def acc(u, t, r=0): return ACC0 + (u * 4 + t) * 4 + r
WF0 = 0
XF0 = 52

def gemm1_setup(a, name):
    a("s_load_dwordx2 s[4:5], s[0:1], 8")
    a("s_load_dwordx2 s[6:7], s[0:1], 32")
    a("s_load_dwordx2 s[28:29], s[0:1], 64")
    a("v_lshrrev_b32 v1, 6, v0")
    a("v_and_b32 v0, 63, v0")
    a("s_and_b32 s26, s2, 7")
    a("v_readfirstlane_b32 s24, v1")
    a("s_lshr_b32 s25, s2, 3")
    a("s_and_b32 s3, s25, 3")
    a("s_lshr_b32 s25, s25, 2")
    a("s_lshl_b32 s26, s26, 1")
    a("s_and_b32 s30, s3, 1")
    a("s_add_u32 s26, s26, s30")
    a("s_lshr_b32 s3, s3, 1")
    a("s_lshl_b32 s3, s3, 4")
    a("s_add_u32 s26, s26, s3")
    a("s_lshl_b32 s3, s25, 2")
    a("s_add_u32 s3, s3, s24")
    a("s_lshl_b32 s3, s3, 17")
    a("v_lshlrev_b32 v1, 4, v0")
    a("v_add_u32 v1, s3, v1")
    a("s_and_b32 s31, s26, 1")
    a("s_lshl_b32 s31, s31, 1")
    a("s_mul_i32 s32, s26, 224")
    a("s_lshl_b32 s33, s26, 6")
    def f_off(dst, cexpr_reg):
        a(f"v_mul_u32_u24 v12, 4682, v{cexpr_reg}")
        a("v_lshrrev_b32 v12, 16, v12")
        a("v_mul_u32_u24 v13, 14, v12")
        a(f"v_sub_u32 v13, v{cexpr_reg}, v13")
        a("v_add_u32 v13, s31, v13")
        a("v_subrev_u32 v14, 14, v13")
        a("v_cmp_le_u32 vcc, 14, v13")
        a("s_nop 1")
        a("v_cndmask_b32 v13, v13, v14, vcc")
        a("v_mul_u32_u24 v12, 7168, v12")
        a("v_lshl_add_u32 v12, v13, 4, v12")
        a(f"v_add_u32 v{dst}, s32, v12")
    def q_off(dst, creg):
        a(f"v_mul_u32_u24 v12, 5462, v{creg}")
        a("v_lshrrev_b32 v12, 16, v12")
        a("v_mul_u32_u24 v13, 12, v12")
        a(f"v_sub_u32 v13, v{creg}, v13")
        a("v_lshrrev_b32 v14, 1, v13")
        a("v_bfe_u32 v15, v12, 2, 1")
        a("v_xor_b32 v14, v14, v15")
        a("v_and_b32 v13, 1, v13")
        a("v_lshlrev_b32 v13, 4, v13")
        a("v_and_b32 v15, 1, v14")
        a("v_lshl_add_u32 v13, v15, 5, v13")
        a("v_lshrrev_b32 v14, 1, v14")
        a("v_lshl_add_u32 v13, v14, 11, v13")
        a("v_mul_u32_u24 v12, 6144, v12")
        a("v_add_u32 v12, v12, v13")
        a(f"v_add_u32 v{dst}, s33, v12")
    a("s_lshl_b32 s3, s24, 4")
    a("s_add_u32 s3, s3, 384")
    a("v_and_b32 v11, 15, v0")
    a("v_add_u32 v11, s3, v11")
    f_off(5, 11)
    a("s_cmp_lt_u32 s24, 2")
    a(f"s_cbranch_scc0 {name}_fsetup")
    a("s_mul_i32 s3, s24, 192")
    for n in range(3):
        a(f"v_add_u32 v11, s3, v0")
        if n: a(f"v_add_u32 v11, {64*n}, v11")
        q_off(2 + n, 11)
    a("s_mul_i32 s27, s24, 3072")
    a(f"s_mov_b32 s23, {32*6144}")
    a(f"s_branch {name}_setup2")
    a.raw(f"{name}_fsetup:")
    a("s_sub_u32 s3, s24, 2")
    a("s_mul_i32 s3, s3, 192")
    for n in range(3):
        a(f"v_add_u32 v11, s3, v0")
        if n: a(f"v_add_u32 v11, {64*n}, v11")
        f_off(2 + n, 11)
    a("s_sub_u32 s27, s24, 2")
    a("s_mul_i32 s27, s27, 3072")
    a("s_add_u32 s27, s27, 6144")
    a(f"s_mov_b32 s23, {32*7168}")
    a.raw(f"{name}_setup2:")
    a("s_lshl_b32 s30, s24, 8")
    a("s_add_u32 s30, s30, 12288")
    a("v_lshrrev_b32 v11, 2, v0")
    a("v_and_b32 v12, 3, v0")
    a("v_lshlrev_b32 v12, 3, v12")
    a("v_bfe_u32 v13, v0, 4, 1")
    a("v_lshlrev_b32 v13, 5, v13")
    a("v_mul_u32_u24 v14, 192, v11")
    a("v_add_u32 v14, v14, v12")
    a("v_add_u32 v6, v14, v13")
    a("v_sub_u32 v7, v14, v13")
    a("v_mul_u32_u24 v14, 224, v11")
    a("v_add_u32 v8, v14, v12")
    a(f"v_add_u32 v9, {4*STAGE}, v6")
    a(f"v_add_u32 v10, {4*STAGE}, v7")
    a(f"v_add_u32 v11, {4*STAGE}, v8")
    a("s_waitcnt lgkmcnt(0)")
    srd(a, 8, 28, 4 * MB, WS_XN)
    srd(a, 16, 6, D * F * 2)
    a("s_cmp_lt_u32 s24, 2")
    a("s_cselect_b32 s12, s4, s6")
    a("s_cselect_b32 s13, s5, s7")
    a(f"s_mov_b32 s3, {D*3*D*2}")
    a(f"s_cselect_b32 s14, s3, {D*F*2}")
    a("s_mov_b32 s15, 0x00020000")

def ldsread(a, u, slot):
    hi = slot >= 4
    so = (slot % 4) * STAGE
    for jj in range(2):
        dst = WF0 + 4 * u + 2 * jj
        if u < 6:
            base = (9 if hi else 6) + (u & 1)
            off = so + u * 32 + jj * 3072
        else:
            base = 11 if hi else 8
            off = so + 6144 + (u - 6) * 32 + jj * 3584
        yield f"ds_read_b64_tr_b16 a[{dst}:{dst+1}], v{base} offset:{off}"

def vmem_ops(stage_b, stage_a, NS, NA, do_a, do_b):
    ops = []
    if do_a:
        ia = stage_a % NA
        for t in range(4):
            r = XF0 + ia * 16 + 4 * t
            g = [f"buffer_load_dwordx4 a[{r}:{r+3}], v1, s[8:11], s20 offen offset:{t*1024}"]
            if t == 3: g.append("s_add_u32 s20, s20, 4096")
            ops.append(g)
    if do_b:
        so = (stage_b % NS) * STAGE
        for n in range(3):
            g = [f"s_add_u32 m0, s27, {so + n*1024}", "s_nop 0", f"buffer_load_dwordx4 v{2+n}, s[12:15], s21 offen lds"]
            if n == 2: g.append("s_add_u32 s21, s21, s23")
            ops.append(g)
        ops.append([f"s_add_u32 m0, s30, {so}", "s_mov_b64 exec, 0xffff", "buffer_load_dwordx4 v5, s[16:19], s22 offen lds",
                    "s_mov_b64 exec, -1", f"s_add_u32 s22, s22, {32*7168}"])
    return ops

def mfma(u, t, ia, first):
    d = acc(u, t)
    x = XF0 + ia * 16 + 4 * t
    w = WF0 + 4 * u
    c = "0" if first else f"v[{d}:{d+3}]"
    if u in (4, 5):
        return f"v_mfma_f32_16x16x32_bf16 v[{d}:{d+3}], a[{x}:{x+3}], a[{w}:{w+3}], {c}"
    return f"v_mfma_f32_16x16x32_bf16 v[{d}:{d+3}], a[{w}:{w+3}], a[{x}:{x+3}], {c}"

def step(a, s, NS, DB, NA, nsteps, first=False):
    DA = DB - 1
    do_b = (s + DB) < nsteps
    do_a = (s + DA) < nsteps
    n = 0
    for sp in range(s + 2 - DB, s):
        n += (4 if 0 <= sp + DA < nsteps else 0) + (4 if 0 <= sp + DB < nsteps else 0)
    a(f"s_waitcnt vmcnt({min(n,63)})")
    a("s_barrier")
    ops = vmem_ops(s + DB, s + DA, NS, NA, do_a, do_b)
    pos = {1: 0, 2: 1, 4: 2, 5: 3, 7: 4, 8: 5, 10: 6, 11: 7}
    nxt = (s + 1) < nsteps
    for u in range(13):
        if u in (0, 8):
            a("s_waitcnt lgkmcnt(8)" if (u == 0 or nxt) else "s_waitcnt lgkmcnt(0)")
        for t in range(4):
            a(mfma(u, t, s % NA, first))
        if nxt:
            for ln in ldsread(a, u, (s + 1) % NS): a(ln)
        if u in pos and pos[u] < len(ops):
            for ln in ops[pos[u]]: a(ln)

def gemm1_main(a, name, NS=8, DB=7, NA=8, nsteps=32, st=None):
    DA = DB - 1
    a("s_mov_b32 s20, 0")
    a("s_mov_b32 s21, 0")
    a("s_mov_b32 s22, 0")
    for sp in range(-DB, 0):
        ops = vmem_ops(sp + DB, sp + DA, NS, NA, sp + DA >= 0, True)
        for g in ops:
            for ln in g: a(ln)
    n = 0
    for sp in range(-DB + 1, 0):
        n += (4 if sp + DA >= 0 else 0) + 4
    a(f"s_waitcnt vmcnt({min(n,63)})")
    a("s_barrier")
    for u in range(13):
        for ln in ldsread(a, u, 0): a(ln)
        if u == 6: a("s_waitcnt lgkmcnt(4)")
    U = max(NS, NA)
    assert U % NS == 0 and U % NA == 0
    tail = U * ((DB + U - 1) // U)
    nloop = (nsteps - U - tail) // U
    a("s_waitcnt lgkmcnt(0)")
    if st: st(a, "prolog")
    for s in range(U):
        step(a, s, NS, DB, NA, nsteps, first=(s == 0))
    if st: st(a, "peel")
    if nloop > 0:
        a(f"s_mov_b32 s31, {nloop}")
        a.raw(f"{name}_loop:")
        for s in range(U, 2 * U):
            step(a, s, NS, DB, NA, nsteps)
        a("s_sub_u32 s31, s31, 1")
        a("s_cmp_lg_u32 s31, 0")
        a(f"s_cbranch_scc1 {name}_loop")
    if st: st(a, "loop")
    for s in range(U + nloop * U, nsteps):
        step(a, s, NS, DB, NA, nsteps)

def gemm1_epilogue(a, name, sc=""):
    srd(a, 8, 28, 4 * MB, WS_Q)
    srd(a, 12, 28, 4 * MB, WS_K)
    srd(a, 16, 28, 4 * MB, WS_V)
    srd(a, 20, 28, H_BYTES, WS_H)
    a("v_and_b32 v2, 15, v0")
    a("v_lshrrev_b32 v3, 4, v0")
    a("v_lshlrev_b32 v3, 9, v3")
    a("s_lshl_b32 s3, s25, 3")
    a("s_lshl_b32 s30, s24, 1")
    a("s_add_u32 s3, s3, s30")
    a("s_lshl_b32 s30, s26, 17")
    a("s_lshl_b32 s31, s3, 11")
    a("s_add_u32 s30, s30, s31")
    a("v_lshl_add_u32 v4, v2, 4, v3")
    a("v_add_u32 v4, s30, v4")
    a("v_and_b32 v5, 7, v2")
    a("v_lshrrev_b32 v6, 3, v2")
    a("v_lshl_add_u32 v5, v6, 4, v5")
    a("v_lshl_add_u32 v5, v5, 4, v3")
    a("v_add_u32 v5, s30, v5")
    a(f"s_mul_i32 s31, s3, {112*2048}")
    a("s_mul_i32 s32, s26, 7")
    a("s_add_u32 s32, s32, 1")
    a("s_lshr_b32 s32, s32, 1")
    a("s_lshl_b32 s33, s32, 11")
    a("s_add_u32 s31, s31, s33")
    a("v_lshl_add_u32 v6, v2, 4, v3")
    a("v_add_u32 v6, s31, v6")
    a("s_and_b32 s33, s26, 1")
    a("s_cmp_eq_u32 s33, 0")
    a("s_mov_b32 s39, 6144")
    a("s_cselect_b32 s33, s39, -2040")
    a("v_add_u32 v7, s33, v6")
    a(f"s_mov_b32 s34, {112*2048}")
    import struct, math
    qs = struct.unpack("<I", struct.pack("<f", math.log2(math.e) / math.sqrt(32.0)))[0]
    a(f"s_mov_b32 s35, {hex(qs)}")
    a("s_mov_b32 s36, 0xbfb8aa3b")
    a("s_nop 7")
    for t in range(4):
        for uu in range(2):
            for r in range(4):
                a(f"v_mul_f32 v{acc(uu,t,r)}, s35, v{acc(uu,t,r)}")
        for uu in range(2):
            a(f"v_cvt_pk_bf16_f32 v{16+2*uu}, v{acc(uu,t,0)}, v{acc(uu,t,1)}")
            a(f"v_cvt_pk_bf16_f32 v{17+2*uu}, v{acc(uu,t,2)}, v{acc(uu,t,3)}")
        a(f"buffer_store_dwordx4 v[16:19], v4, s[8:11], 0 offen offset:{(t>>1)*2048 + (t&1)*256} {sc}")
        a("s_nop 1")
    for t in range(4):
        b = 20 + 4 * (t & 1)
        for uu in range(2):
            a(f"v_cvt_pk_bf16_f32 v{b+2*uu}, v{acc(2+uu,t,0)}, v{acc(2+uu,t,1)}")
            a(f"v_cvt_pk_bf16_f32 v{b+1+2*uu}, v{acc(2+uu,t,2)}, v{acc(2+uu,t,3)}")
        a(f"buffer_store_dwordx4 v[{b}:{b+3}], v5, s[12:15], 0 offen offset:{(t>>1)*2048 + (t&1)*128} {sc}")
    for bb in range(2):
        for td in range(2):
            b = 28 + 4 * td
            for tt in range(2):
                t = 2 * bb + tt
                a(f"v_cvt_pk_bf16_f32 v{b+2*tt}, v{acc(4+td,t,0)}, v{acc(4+td,t,1)}")
                a(f"v_cvt_pk_bf16_f32 v{b+1+2*tt}, v{acc(4+td,t,2)}, v{acc(4+td,t,3)}")
            a(f"buffer_store_dwordx4 v[{b}:{b+3}], v4, s[16:19], 0 offen offset:{bb*2048 + td*256} {sc}")
    def silu4(src, tmp):
        for r in range(4): a(f"v_mul_f32 v{tmp+r}, s36, v{src+r}")
        for r in range(4): a(f"v_exp_f32 v{tmp+r}, v{tmp+r}")
        for r in range(4): a(f"v_add_f32 v{tmp+r}, 1.0, v{tmp+r}")
        for r in range(4): a(f"v_rcp_f32 v{tmp+r}, v{tmp+r}")
        for r in range(4): a(f"v_mul_f32 v{src+r}, v{src+r}, v{tmp+r}")
    k = 0
    for t in range(4):
        so = "0" if t < 2 else "s34"
        for p in range(0, 6, 2):
            b = 16 + 4 * (k & 1); k += 1
            for q in range(2):
                silu4(acc(6 + p + q, t), 36)
                a(f"v_cvt_pk_bf16_f32 v{b+2*q}, v{acc(6+p+q,t,0)}, v{acc(6+p+q,t,1)}")
                a(f"v_cvt_pk_bf16_f32 v{b+1+2*q}, v{acc(6+p+q,t,2)}, v{acc(6+p+q,t,3)}")
            off = (p // 2) * 2048 + (t & 1) * 256
            if off >= 4096:
                sreg = "s37" if t < 2 else "s38"
                a(f"buffer_store_dwordx4 v[{b}:{b+3}], v6, s[20:23], {sreg} offen offset:{off-4096} {sc}")
            else:
                a(f"buffer_store_dwordx4 v[{b}:{b+3}], v6, s[20:23], {so} offen offset:{off} {sc}")
        silu4(acc(12, t), 36)
        b = 24 + 2 * (t & 1)
        a(f"v_cvt_pk_bf16_f32 v{b}, v{acc(12,t,0)}, v{acc(12,t,1)}")
        a(f"v_cvt_pk_bf16_f32 v{b+1}, v{acc(12,t,2)}, v{acc(12,t,3)}")
        a(f"buffer_store_dwordx2 v[{b}:{b+1}], v7, s[20:23], {so} offen offset:{(t&1)*256} {sc}")

def gen_gemm1(name="gemm1_kernel", NS=8, DB=7, NA=8, sc="", stamps=False):
    a = Asm()
    st = Stamps(stamps)
    kernel_header(a, name)
    a("s_cmp_ge_u32 s2, 256")
    a(f"s_cbranch_scc1 {name}_end")
    st.real(a, 0)
    st(a, "start")
    gemm1_setup(a, name)
    st(a, "setup")
    gemm1_main(a, name, NS, DB, NA, st=st)
    st(a, "main")
    a("s_mov_b32 s37, 4096")
    a(f"s_mov_b32 s38, {4096 + 112*2048}")
    gemm1_epilogue(a, name, sc)
    st(a, "epi")
    a("s_waitcnt vmcnt(0)")
    st(a, "drain")
    st.real(a, 1)
    st.flush(a, 24)
    a("s_waitcnt vmcnt(0)")
    a.raw(f"{name}_end:")
    a("s_endpgm")
    kernel_desc(a, name, 512, 256)
    return a
```

```python
from genlib import *
from layout import *

KPS = 4
STG = KPS * 4096
ACCV = 16
WF = 0
XF = 32
def acc(u, t, r=0): return ACCV + (u * 2 + t) * 4 + r

def setup(a, name):
    a("s_load_dwordx2 s[4:5], s[0:1], 40")
    a("s_load_dwordx2 s[6:7], s[0:1], 16")
    a("s_load_dwordx2 s[28:29], s[0:1], 64")
    a("s_load_dwordx2 s[40:41], s[0:1], 0")
    a("s_load_dwordx2 s[42:43], s[0:1], 48")
    a("v_lshrrev_b32 v1, 6, v0")
    a("v_and_b32 v0, 63, v0")
    a("s_and_b32 s3, s2, 7")
    a("v_readfirstlane_b32 s24, v1")
    a("s_lshr_b32 s30, s2, 3")
    a("s_lshr_b32 s25, s3, 1")
    a("s_lshl_b32 s25, s25, 2")
    a("s_and_b32 s31, s30, 3")
    a("s_add_u32 s25, s25, s31")
    a("s_and_b32 s26, s3, 1")
    a("s_lshl_b32 s26, s26, 3")
    a("s_lshr_b32 s31, s30, 2")
    a("s_add_u32 s26, s26, s31")
    a("v_and_b32 v11, 15, v0")
    a("v_lshrrev_b32 v12, 4, v0")
    a("v_lshlrev_b32 v13, 9, v12")
    a("v_lshl_add_u32 v13, v11, 4, v13")
    a("s_lshl_b32 s31, s25, 2")
    a("s_add_u32 s31, s31, s24")
    a(f"s_mul_i32 s32, s31, {112*2048}")
    a("v_add_u32 v1, s32, v13")
    a("s_lshl_b32 s32, s31, 16")
    a("v_add_u32 v2, s32, v13")
    a("v_lshrrev_b32 v13, 3, v0")
    a("s_lshl_b32 s32, s24, 3")
    a("v_add_u32 v13, s32, v13")
    a("v_bfe_u32 v14, v13, 1, 2")
    a("v_bfe_u32 v15, v0, 1, 2")
    a("v_xor_b32 v14, v14, v15")
    a("v_and_b32 v15, 1, v0")
    a("v_lshlrev_b32 v15, 4, v15")
    a("v_lshl_add_u32 v14, v14, 5, v15")
    a("v_lshl_add_u32 v14, v13, 11, v14")
    a("s_lshl_b32 s32, s26, 7")
    a("v_add_u32 v3, s32, v14")
    a("s_lshl_b32 s27, s24, 10")
    a("v_lshrrev_b32 v13, 2, v0")
    a("v_and_b32 v14, 3, v0")
    a("v_lshlrev_b32 v14, 3, v14")
    a("v_bfe_u32 v15, v13, 1, 2")
    for u in range(4):
        a(f"v_xor_b32 v10, {u}, v15")
        a("v_lshl_add_u32 v10, v10, 5, v14")
        a(f"v_lshl_add_u32 v{4+u}, v13, 7, v10")
    a("v_bfe_u32 v11, v0, 5, 1")
    a("v_bfe_u32 v12, v0, 4, 1")
    a("v_bfe_u32 v13, v0, 2, 2")
    a("v_lshl_add_u32 v13, v12, 2, v13")
    a("v_lshl_add_u32 v13, v11, 4, v13")
    for u in range(4):
        a(f"v_xor_b32 v10, {u}, v15")
        a("v_lshl_add_u32 v10, v10, 5, v14")
        a(f"v_lshl_add_u32 v{52+u}, v13, 7, v10")
    a("s_waitcnt lgkmcnt(0)")
    srd(a, 8, 28, H_BYTES, WS_H)
    srd(a, 12, 4, F * D * 2)
    srd(a, 16, 28, 4 * MB, WS_O)
    srd(a, 20, 6, D * D * 2)

def ldsread(u, slot, kk, isO, buf):
    out = []
    for jj in range(2):
        dst = WF + 16 * buf + 4 * u + 2 * jj
        base = (52 if isO else 4) + u
        off = slot * STG + kk * 4096 + jj * (1024 if isO else 2048)
        out.append(f"ds_read_b64_tr_b16 a[{dst}:{dst+1}], v{base} offset:{off}")
    return out

NSTG = 36
def isO(stage): return stage >= 28
def load_ops(stage, NS, NA):
    ops = []
    o = isO(stage)
    ia = stage % NA
    areg, asrd, aso = ("v2", "s[16:19]", "s21x") if o else ("v1", "s[8:11]", "s20x")
    for kk in range(KPS):
        for t in range(2):
            r = XF + (ia * KPS + kk) * 8 + 4 * t
            so = "s44" if not o else "s45"
            extra = (kk >> 1)
            sreg = {(False, 0): "s44", (False, 1): "s46", (True, 0): "s45", (True, 1): "s47"}[(o, extra)]
            ops.append([f"buffer_load_dwordx4 a[{r}:{r+3}], {areg}, {asrd}, {sreg} offen offset:{(kk&1)*2048 + t*256}"])
    adv = [("s44", "s46") if not o else ("s45", "s47")][0]
    ops[-1] += [f"s_add_u32 {adv[0]}, {adv[0]}, 8192", f"s_add_u32 {adv[1]}, {adv[1]}, 8192"]
    slot = stage % NS
    bsrd, bso = ("s[20:23]", "s49") if o else ("s[12:15]", "s48")
    for kk in range(KPS):
        ops.append([f"s_add_u32 m0, s27, {slot*STG + kk*4096}", "s_nop 0", f"buffer_load_dwordx4 v3, {bsrd}, {bso} offen lds", f"s_add_u32 {bso}, {bso}, 65536"])
    return ops

def stage_code(a, s, NS, NA, DB, first=False, body_only=False):
    DA = DB - 1
    n = 0
    for sp in range(s + 2 - DB, s):
        n += (8 if 0 <= sp + DA < NSTG else 0) + (4 if 0 <= sp + DB < NSTG else 0)
    a(f"s_waitcnt vmcnt({min(n,63)})")
    a("s_barrier")
    ops = []
    if s + DA < NSTG: ops += load_ops(s + DA, NS, NA)[:8]
    if s + DB < NSTG: ops += load_ops(s + DB, NS, NA)[8:]
    oi = 0
    for kk in range(KPS):
        buf = kk & 1
        if kk < KPS - 1: nslot, nkk, nO, has = s % NS, kk + 1, isO(s), True
        else: nslot, nkk, nO, has = (s + 1) % NS, 0, isO(s + 1), (s + 1) < NSTG
        rd = []
        if has:
            for u in range(4): rd += ldsread(u, nslot, nkk, nO, buf ^ 1)
        a("s_waitcnt lgkmcnt(0)")
        k = 0
        for u in range(4):
            for t in range(2):
                d = acc(u, t)
                x = XF + ((s % NA) * KPS + kk) * 8 + 4 * t
                w = WF + 16 * buf + 4 * u
                c = "0" if (first and kk == 0) else f"v[{d}:{d+3}]"
                a(f"v_mfma_f32_16x16x32_bf16 v[{d}:{d+3}], a[{w}:{w+3}], a[{x}:{x+3}], {c}")
                if 2 * k < len(rd): a(rd[2 * k]); a(rd[2 * k + 1])
                k += 1
                if k in (5, 6, 8) and oi < len(ops):
                    for ln in ops[oi]: a(ln)
                    oi += 1
    while oi < len(ops):
        for ln in ops[oi]: a(ln)
        oi += 1

def main(a, name, NS=4, NA=4, DB=3, st=None):
    DA = DB - 1
    for r in ("s44", "s45", "s48", "s49"): a(f"s_mov_b32 {r}, 0")
    a("s_mov_b32 s46, 4096")
    a("s_mov_b32 s47, 4096")
    for sp in range(-DB, 0):
        ops = []
        if sp + DA >= 0: ops += load_ops(sp + DA, NS, NA)[:8]
        ops += load_ops(sp + DB, NS, NA)[8:]
        for g in ops:
            for ln in g: a(ln)
    n = 0
    for sp in range(-DB + 1, 0):
        n += (8 if sp + DA >= 0 else 0) + 4
    a(f"s_waitcnt vmcnt({n})")
    a("s_barrier")
    for u in range(4):
        for ln in ldsread(u, 0, 0, False, 0): a(ln)
    if st: st(a, "prolog")
    U = 4
    assert U % NS == 0 and U % NA == 0
    for s in range(4): stage_code(a, s, NS, NA, DB, first=(s == 0))
    a("s_mov_b32 s31, 5")
    a.raw(f"{name}_loop:")
    for s in range(4, 8): stage_code(a, s, NS, NA, DB)
    a("s_sub_u32 s31, s31, 1")
    a("s_cmp_lg_u32 s31, 0")
    a(f"s_cbranch_scc1 {name}_loop")
    if st: st(a, "loop")
    for s in range(24, NSTG): stage_code(a, s, NS, NA, DB)

def epilogue(a, name):
    srd(a, 8, 40, S * D * 2)
    srd(a, 12, 42, S * D * 2)
    a("v_and_b32 v1, 15, v0")
    a("s_lshl_b32 s3, s25, 7")
    a("s_lshl_b32 s30, s24, 5")
    a("s_add_u32 s3, s3, s30")
    a("v_add_u32 v1, s3, v1")
    a("v_lshlrev_b32 v1, 11, v1")
    a("v_bfe_u32 v2, v0, 4, 1")
    a("v_bfe_u32 v3, v0, 5, 1")
    a("v_lshl_add_u32 v1, v2, 5, v1")
    a("v_lshl_add_u32 v1, v3, 4, v1")
    a("s_lshl_b32 s30, s26, 7")
    a("v_add_u32 v1, s30, v1")
    a("s_mov_b32 s31, 32768")
    for t in range(2):
        for p in range(2):
            r = 56 + (t * 2 + p) * 4
            so = "0" if t == 0 else "s31"
            a(f"buffer_load_dwordx4 v[{r}:{r+3}], v1, s[8:11], {so} offen offset:{p*64}")
    a("s_mov_b32 s30, 0xffff0000")
    a("s_nop 4")
    for t in range(2):
        for p in range(2):
            ua, ub = 2 * p, 2 * p + 1
            for r in range(4):
                a(f"v_permlane16_swap_b32 v{acc(ua,t,r)}, v{acc(ub,t,r)}")
    a("s_waitcnt vmcnt(0)")
    for t in range(2):
        for p in range(2):
            ua, ub = 2 * p, 2 * p + 1
            xr = 56 + (t * 2 + p) * 4
            vals = [acc(ua, t, r) for r in range(4)] + [acc(ub, t, r) for r in range(4)]
            for k in range(4):
                a(f"v_lshlrev_b32 v72, 16, v{xr+k}")
                a(f"v_and_b32 v73, s30, v{xr+k}")
                a(f"v_add_f32 v72, v72, v{vals[2*k]}")
                a(f"v_add_f32 v73, v73, v{vals[2*k+1]}")
                a(f"v_cvt_pk_bf16_f32 v{xr+k}, v72, v73")
            so = "0" if t == 0 else "s31"
            a(f"buffer_store_dwordx4 v[{xr}:{xr+3}], v1, s[12:15], {so} offen offset:{p*64}")

def gen_gemm2(name="gemm2_kernel", stamps=False):
    a = Asm()
    st = Stamps(stamps)
    kernel_header(a, name)
    a("s_cmp_ge_u32 s2, 256")
    a(f"s_cbranch_scc1 {name}_end")
    st.real(a, 0); st(a, "start")
    setup(a, name)
    main(a, name, st=st)
    st(a, "main")
    a("s_nop 7")
    epilogue(a, name)
    st(a, "epi")
    a("s_waitcnt vmcnt(0)")
    st(a, "drain"); st.real(a, 1)
    st.flush(a, 24, kid=2)
    a("s_waitcnt vmcnt(0)")
    a.raw(f"{name}_end:")
    a("s_endpgm")
    kernel_desc(a, name, 512, 256)
    return a
G2LDS = 4 * STG
```

```python
from genlib import *
from layout import *

def gen_ln(name="ln_kernel"):
    a = Asm()
    kernel_header(a, name)
    a("s_cmp_ge_u32 s2, 128")
    a(f"s_cbranch_scc1 {name}_end")
    a("s_load_dwordx2 s[4:5], s[0:1], 0")
    a("s_load_dwordx2 s[6:7], s[0:1], 64")
    a("v_and_b32 v1, 63, v0")
    a("v_lshrrev_b32 v2, 6, v0")
    a("v_and_b32 v3, 15, v1")
    a("v_lshrrev_b32 v4, 4, v1")
    a("s_lshl_b32 s3, s2, 4")
    a("v_add_u32 v5, s3, v3")
    a("v_lshlrev_b32 v5, 11, v5")
    a("v_lshl_add_u32 v5, v2, 8, v5")
    a("v_lshl_add_u32 v5, v4, 3, v5")
    a("s_lshr_b32 s16, s2, 2")
    a("s_lshl_b32 s16, s16, 17")
    a("s_and_b32 s17, s2, 3")
    a("s_lshl_b32 s17, s17, 10")
    a("s_add_u32 s16, s16, s17")
    a("v_lshlrev_b32 v6, 14, v2")
    a("v_lshl_add_u32 v6, v1, 4, v6")
    a("v_add_u32 v6, s16, v6")
    a("v_mul_u32_u24 v8, 48, v3")
    a("v_lshl_add_u32 v7, v2, 2, v8")
    a("s_waitcnt lgkmcnt(0)")
    srd(a, 8, 4, S * D * 2)
    srd(a, 12, 6, 4 * MB, WS_XN)
    for i in range(4):
        for jj in range(2):
            r = 16 + 4 * i + 2 * jj
            a(f"buffer_load_dwordx2 v[{r}:{r+1}], v5, s[8:11], 0 offen offset:{i*64+jj*32}")
    a("s_mov_b32 s20, 4096")
    a("s_mov_b32 s21, 8192")
    a("s_mov_b32 s22, 12288")
    a("s_mov_b32 s23, 0xffff0000")
    a("s_waitcnt vmcnt(0)")
    for k in range(16):
        a(f"v_lshlrev_b32 v{32+2*k}, 16, v{16+k}")
        a(f"v_and_b32 v{33+2*k}, s23, v{16+k}")
    def wave_reduce_and_share(src, slot):
        a(f"v_mov_b32 v10, v{src}")
        a("s_nop 1")
        a(f"v_permlane32_swap_b32 v{src}, v10")
        a("s_nop 1")
        a(f"v_add_f32 v{src}, v{src}, v10")
        a(f"v_mov_b32 v10, v{src}")
        a("s_nop 1")
        a(f"v_permlane16_swap_b32 v{src}, v10")
        a("s_nop 1")
        a(f"v_add_f32 v{src}, v{src}, v10")
        a(f"ds_write_b32 v7, v{src} offset:{slot}")
        a("s_waitcnt lgkmcnt(0)")
        a("s_barrier")
        a(f"ds_read_b128 v[64:67], v8 offset:{slot}")
        a(f"ds_read_b128 v[68:71], v8 offset:{slot+16}")
        a("s_waitcnt lgkmcnt(0)")
        a("v_add_f32 v64, v64, v65")
        a("v_add_f32 v66, v66, v67")
        a("v_add_f32 v68, v68, v69")
        a("v_add_f32 v70, v70, v71")
        a("v_add_f32 v64, v64, v66")
        a("v_add_f32 v68, v68, v70")
        a("v_add_f32 v9, v64, v68")
    for k in range(4):
        a(f"v_add_f32 v{72+k}, v{32+k}, v{36+k}")
    for k in range(8, 32):
        a(f"v_add_f32 v{72+(k%4)}, v{72+(k%4)}, v{32+k}")
    a("v_add_f32 v72, v72, v73")
    a("v_add_f32 v74, v74, v75")
    a("v_add_f32 v72, v72, v74")
    wave_reduce_and_share(72, 0)
    a("v_mul_f32 v11, 0x3a800000, v9")
    for k in range(4):
        a(f"v_sub_f32 v76, v{32+k}, v11")
        a(f"v_mul_f32 v{72+k}, v76, v76")
    for k in range(4, 32):
        a(f"v_sub_f32 v76, v{32+k}, v11")
        a(f"v_fmac_f32 v{72+(k%4)}, v76, v76")
    a("v_add_f32 v72, v72, v73")
    a("v_add_f32 v74, v74, v75")
    a("v_add_f32 v72, v72, v74")
    wave_reduce_and_share(72, 1024)
    a("v_mul_f32 v12, 0x3a800000, v9")
    a("v_cvt_pk_bf16_f32 v13, v11, v12")
    a("s_nop 0")
    a("v_lshlrev_b32 v11, 16, v13")
    a("v_and_b32 v12, s23, v13")
    a("v_add_f32 v12, 0x3727c5ac, v12")
    a("v_cvt_pk_bf16_f32 v12, v12, v12")
    a("s_nop 0")
    a("v_and_b32 v12, s23, v12")
    a("v_sqrt_f32 v12, v12")
    a("s_nop 0")
    a("v_cvt_pk_bf16_f32 v12, v12, v12")
    a("s_nop 0")
    a("v_and_b32 v12, s23, v12")
    a("v_rcp_f32 v14, v12")
    a("s_nop 0")
    for k in range(16):
        x0, x1 = 32 + 2 * k, 33 + 2 * k
        a(f"v_sub_f32 v{x0}, v{x0}, v11")
        a(f"v_sub_f32 v{x1}, v{x1}, v11")
        a(f"v_cvt_pk_bf16_f32 v76, v{x0}, v{x1}")
        a("s_nop 0")
        a(f"v_lshlrev_b32 v{x0}, 16, v76")
        a(f"v_and_b32 v{x1}, s23, v76")
        a(f"v_mul_f32 v77, v{x0}, v14")
        a(f"v_mul_f32 v78, v{x1}, v14")
        a(f"v_fma_f32 v{x0}, -v77, v12, v{x0}")
        a(f"v_fma_f32 v{x1}, -v78, v12, v{x1}")
        a(f"v_fmac_f32 v77, v{x0}, v14")
        a(f"v_fmac_f32 v78, v{x1}, v14")
        a(f"v_cvt_pk_bf16_f32 v{16+k}, v77, v78")
    so = ["0", "s20", "s21", "s22"]
    a("s_nop 1")
    for i in range(4):
        a(f"buffer_store_dwordx4 v[{16+4*i}:{19+4*i}], v6, s[12:15], {so[i]} offen")
    a("s_waitcnt vmcnt(0)")
    a.raw(f"{name}_end:")
    a("s_endpgm")
    kernel_desc(a, name, 80, 80, 32)
    return a
```

```python
from build import *
from k_ln import *
from k_gemm1 import *
from k_att import *
from k_gemm2 import *
import sys
stamps = len(sys.argv) > 1 and sys.argv[1] == "st"
out = "t_all"
final = None if stamps else "parallel_sum__softmax_full_mha__dense_activation_silu__prompt.s"
build([("ln_kernel", gen_ln(), 256, 512, 2048, 96),
       ("gemm1_kernel", gen_gemm1(stamps=stamps), 256, 256, 8 * STAGE, 512),
       ("att_kernel", gen_att(stamps=stamps), 256, 256, 3 * SLOT, 512),
       ("gemm2_kernel", gen_gemm2(stamps=stamps), 256, 256, G2LDS, 512)], out, final)
```

```python
from genlib import *
from layout import *

SA, SB = 16, 32
NA_, NB_ = 48, 64
PA, PB = 80, 88
ONES = 96
KF, VF, QF = 0, 8, 16
OA, OB = 32, 48
LA, LB = 64, 68
SLOT = 32768
NBLK = 8

def wg_decode(a):
    a("v_lshrrev_b32 v1, 6, v0")
    a("v_and_b32 v0, 63, v0")
    a("s_and_b32 s26, s2, 7")
    a("v_readfirstlane_b32 s24, v1")
    a("s_lshr_b32 s25, s2, 3")
    a("s_and_b32 s3, s25, 3")
    a("s_lshr_b32 s25, s25, 2")
    a("s_lshl_b32 s26, s26, 1")
    a("s_and_b32 s30, s3, 1")
    a("s_add_u32 s26, s26, s30")
    a("s_lshr_b32 s3, s3, 1")
    a("s_lshl_b32 s3, s3, 4")
    a("s_add_u32 s26, s26, s3")

def m32(d, A, B, C, dt="v"):
    c = C if isinstance(C, str) else f"{dt}[{C}:{C+15}]"
    return f"v_mfma_f32_32x32x16_bf16 {dt}[{d}:{d+15}], {A}, {B}, {c}"

def s_mfma(S, Q, NEG, uu):
    if uu == 0:
        return m32(S, f"a[{KF}:{KF+3}]", f"a[{Q}:{Q+3}]", NEG if isinstance(NEG, str) else NEG)
    return m32(S, f"a[{KF+4}:{KF+7}]", f"a[{Q+4}:{Q+7}]", S)
def pv_mfma(O, P, uu):
    return m32(O, f"a[{VF+4*uu}:{VF+4*uu+3}]", f"v[{P+4*uu}:{P+4*uu+3}]", O, "a")
def l_mfma(L, P, uu):
    return f"v_mfma_f32_16x16x32_bf16 a[{L}:{L+3}], v[{ONES}:{ONES+3}], v[{P+4*uu}:{P+4*uu+3}], a[{L}:{L+3}]"

def phase(a, SX, PX, SY, QY, NY, OY, LY, PY, lds_after2, lds_after4, wait1=None, wait3=None, extra=None, var=''):
    extra = extra or {}
    e = lambda i: a(f"v_exp_f32 v{SX+i}, v{SX+i}")
    c = lambda i: a(f"v_cvt_pk_bf16_f32 v{PX+i}, v{SX+2*i}, v{SX+2*i+1}")
    def ex(p):
        for ln in extra.get(p, []): a(ln)
    if wait1: a(wait1)
    a(s_mfma(SY, QY, NY, 0)); ex(0)
    e(0); e(1); e(2)
    a(s_mfma(SY, QY, NY, 1))
    e(3)
    for ln in lds_after2: a(ln)
    e(4); e(5)
    if wait3: a(wait3)
    a(pv_mfma(OY, PY, 0)); ex(1)
    e(6); e(7); c(0); c(1)
    a(pv_mfma(OY, PY, 1))
    e(8)
    for ln in lds_after4: a(ln)
    e(9); c(2); c(3)
    if 'nol' not in var.split(','): a(l_mfma(LY, PY, 0))
    ex(2)
    e(10); e(11)
    if 'nol' not in var.split(','): a(l_mfma(LY, PY, 1))
    e(12); e(13); c(4); e(14); e(15); c(5); c(6); c(7)

def kread(base, off):
    return [f"ds_read_b128 a[{KF}:{KF+3}], v{base} offset:{off}", f"ds_read_b128 a[{KF+4}:{KF+7}], v{base} offset:{off+1024}"]
def vread(base, off):
    return [f"ds_read_b128 a[{VF}:{VF+3}], v{base} offset:{off}", f"ds_read_b128 a[{VF+4}:{VF+7}], v{base} offset:{off+1024}"]

def dma_ops():
    ops = []
    for kv in range(2):
        for n in range(4):
            g = []
            if n == 0: g += [f"s_add_u32 m0, s33, {kv*16384}", "s_nop 0"]
            g.append(f"buffer_load_dwordx4 v3, s[{8+4*kv}:{11+4*kv}], s34 offen offset:{n*1024} lds")
            ops.append(g)
    return ops

def att_body(a, name, st, var='', pf=True):
    a("s_lshl_b32 s3, s26, 17")
    a(f"s_add_u32 s8, s28, {WS_K}")
    a("s_addc_u32 s9, s29, 0")
    a("s_add_u32 s8, s8, s3")
    a("s_addc_u32 s9, s9, 0")
    a("s_mov_b32 s10, 131072")
    a("s_mov_b32 s11, 0x00020000")
    a(f"s_add_u32 s12, s28, {WS_V}")
    a("s_addc_u32 s13, s29, 0")
    a("s_add_u32 s12, s12, s3")
    a("s_addc_u32 s13, s13, 0")
    a("s_mov_b32 s14, 131072")
    a("s_mov_b32 s15, 0x00020000")
    srd(a, 16, 28, 4 * MB, WS_Q)
    srd(a, 20, 28, 4 * MB, WS_O)
    a("v_lshlrev_b32 v1, 4, v0")
    a("s_lshl_b32 s30, s24, 12")
    a("v_add_u32 v3, s30, v1")
    a("s_lshl_b32 s31, s25, 3")
    a("s_lshl_b32 s32, s24, 1")
    a("s_add_u32 s31, s31, s32")
    a("s_lshl_b32 s32, s31, 11")
    a("s_add_u32 s32, s32, s3")
    for qt in range(2):
        for uu in range(2):
            r = QF + 8 * qt + 4 * uu
            a(f"buffer_load_dwordx4 a[{r}:{r+3}], v1, s[16:19], s32 offen offset:{qt*2048+uu*1024}")
    a("s_mov_b32 s35, s30")
    for sgi in range(2):
        a(f"s_add_u32 s33, s35, {sgi*SLOT}")
        a(f"s_mov_b32 s34, {sgi*16384}")
        for g in dma_ops():
            for ln in g:
                a(ln)
    a("v_and_b32 v4, 3, v0")
    a("v_bfe_u32 v5, v0, 2, 1")
    a("v_bfe_u32 v6, v0, 4, 1")
    a("v_xor_b32 v5, v5, v6")
    a("v_or_b32 v4, v4, v5")
    a("v_cmp_eq_u32 vcc, 0, v4")
    a("v_mov_b32 v5, 0x3f803f80")
    a("s_nop 0")
    for k in range(4):
        a(f"v_cndmask_b32 v{ONES+k}, 0, v5, vcc")
    for r in list(range(OA, OA + 32)) + list(range(LA, LA + 8)) + list(range(VF, VF + 8)):
        a(f"v_accvgpr_write_b32 a{r}, 0")
    for r in range(PB, PB + 8):
        a(f"v_mov_b32 v{r}, 0")
    a("v_mov_b32 v4, v1")
    a(f"v_add_u32 v5, {SLOT}, v1")
    a("s_waitcnt vmcnt(0)")
    a("s_barrier")
    st(a, "loaded")
    for ln in kread(4, 0): a(ln)
    a("s_waitcnt lgkmcnt(0)")
    a(s_mfma(SA, QF, "0", 0)); a(s_mfma(SA, QF, "0", 1))
    a(s_mfma(SB, QF + 8, "0", 0)); a(s_mfma(SB, QF + 8, "0", 1))
    a("s_nop 15")
    for S, N in ((SA, NA_), (SB, NB_)):
        a(f"v_max3_f32 v6, v{S}, v{S+1}, v{S+2}")
        for k in range(3, 15, 2):
            a(f"v_max3_f32 v6, v6, v{S+k}, v{S+k+1}")
        a(f"v_max_f32 v6, v6, v{S+15}")
        a("v_mov_b32 v7, v6")
        a("s_nop 1")
        a("v_permlane32_swap_b32 v6, v7")
        a("s_nop 1")
        a("v_max_f32 v6, v6, v7")
        a("v_xor_b32 v6, 0x80000000, v6")
        for k in range(16):
            a(f"v_mov_b32 v{N+k}, v6")
    a("s_nop 1")
    a(s_mfma(SA, QF, NA_, 0)); a(s_mfma(SA, QF, NA_, 1))
    a("s_nop 15")
    a("s_mov_b32 s36, 0")
    a(f"s_mov_b32 s37, {2*SLOT}")
    a(f"s_mov_b32 s38, {SLOT}")
    a("s_mov_b32 s34, 32768")
    st(a, "prolog")
    a.raw(f"{name}_stage:")
    a("s_waitcnt vmcnt(0)")
    a("s_barrier")
    a("s_add_u32 s33, s35, s37")
    a("s_cmp_lt_u32 s36, 6")
    a("s_cselect_b32 s10, 131072, 0")
    a("s_cselect_b32 s14, 131072, 0")
    ops = dma_ops()
    for b in range(NBLK):
        exA, exB = {}, {}
        if b < 4 and 'nodma' not in var:
            exA[1] = ops[2 * b]
            exB[1] = ops[2 * b + 1]
        nk = kread(4, (b + 1) * 2048) if b < NBLK - 1 else kread(5, 0)
        nv = vread(4, 16384 + b * 2048)
        w1, w3 = "s_waitcnt lgkmcnt(2)", "s_waitcnt lgkmcnt(0)"
        if 'nolds' in var: nk, nv, w1, w3 = [], [], None, None
        if 'nowait' in var: w1, w3 = None, None
        phase(a, SA, PA, SB, QF + 8, NB_, OB, LB, PB, nk, nv, extra=exA, var=var)
        phase(a, SB, PB, SA, QF, NA_, OA, LA, PA, [], [], wait1=w1, wait3=w3, extra=exB, var=var)
    if pf:
        from k_ln import prefetch
        a("s_cmp_lg_u32 s36, 0")
        a(f"s_cbranch_scc1 {name}_nopf")
        a("v_lshlrev_b32 v79x, 4, v0".replace("v79x", "v8"))
        a("s_lshl_b32 s3, s24, 10")
        a("v_add_u32 v8, s3, v8")
        prefetch(a, 40, F * D * 2, 256, 256, 100, 40, "a", voff="v8")
        prefetch(a, 16, D * D * 2, 256, 256, 100, 48, "b", voff="v8")
        a.raw(f"{name}_nopf:")
    a("v_mov_b32 v4, v5")
    a("s_mov_b32 s39, s37")
    a(f"s_add_u32 s37, s37, {SLOT}")
    a(f"s_cmp_ge_u32 s37, {3*SLOT}")
    a("s_cselect_b32 s37, 0, s37")
    a("v_add_u32 v5, s39, v1")
    a("s_add_u32 s34, s34, 16384")
    a("s_add_u32 s36, s36, 1")
    a("s_cmp_lt_u32 s36, 8")
    a(f"s_cbranch_scc1 {name}_stage")
    st(a, "loop")
    a(pv_mfma(OB, PB, 0)); a(pv_mfma(OB, PB, 1))
    a(l_mfma(LB, PB, 0)); a(l_mfma(LB, PB, 1))
    a("s_nop 15")
    a("s_nop 7")

def att_epilogue(a, name, sc=""):
    a("s_lshl_b32 s32, s31, 16")
    a("s_lshl_b32 s3, s26, 11")
    a("s_add_u32 s32, s32, s3")
    a("s_add_u32 s33, s32, 65536")
    for qt, (O, L) in enumerate(((OA, LA), (OB, LB))):
        a(f"v_accvgpr_read_b32 v6, a{L}")
        a("s_nop 0")
        a("v_rcp_f32 v7, v6")
        for k in range(16):
            a(f"v_accvgpr_read_b32 v{16+k}, a{O+k}")
        for k in range(16):
            a(f"v_mul_f32 v{16+k}, v{16+k}, v7")
        for k in range(8):
            a(f"v_cvt_pk_bf16_f32 v{32+8*qt+k}, v{16+2*k}, v{17+2*k}")
        so = "s32" if qt == 0 else "s33"
        for uu in range(2):
            r = 32 + 8 * qt + 4 * uu
            a(f"buffer_store_dwordx4 v[{r}:{r+3}], v1, s[20:23], {so} offen offset:{uu*1024} {sc}")

def gen_att(name="att_kernel", stamps=False, sc="", var="", pf=True):
    a = Asm()
    st = Stamps(stamps)
    kernel_header(a, name)
    a("s_cmp_ge_u32 s2, 256")
    a(f"s_cbranch_scc1 {name}_end")
    st.real(a, 0); st(a, "start")
    a("s_load_dwordx2 s[28:29], s[0:1], 64")
    wg_decode(a)
    a("s_waitcnt lgkmcnt(0)")
    att_body(a, name, st, var, pf)
    att_epilogue(a, name, sc)
    st(a, "epi")
    a("s_waitcnt vmcnt(0)")
    st(a, "drain"); st.real(a, 1)
    st.flush(a, 24, kid=1)
    a("s_waitcnt vmcnt(0)")
    a.raw(f"{name}_end:")
    a("s_endpgm")
    kernel_desc(a, name, 512, 256)
    return a
```

```python
from genlib import *
from layout import *

def prefetch(a, ptr_off, nbytes, nwg, nthreads, dst0, sbase, tag, voff='v79'):
    per_wg = nbytes // nwg
    rounds = (per_wg + nthreads * 16 - 1) // (nthreads * 16)
    a(f"s_load_dwordx2 s[{sbase}:{sbase+1}], s[0:1], {ptr_off}")
    a("s_waitcnt lgkmcnt(0)")
    a(f"s_mov_b32 s{sbase+2}, {nbytes}")
    a(f"s_mov_b32 s{sbase+3}, 0x00020000")
    a(f"s_mul_i32 s{sbase+4}, s2, {per_wg}")
    for r in range(rounds):
        d = dst0 + 4 * (r % 4)
        a(f"buffer_load_dwordx4 v[{d}:{d+3}], {voff}, s[{sbase}:{sbase+3}], s{sbase+4} offen")
        if r < rounds - 1: a(f"s_add_u32 s{sbase+4}, s{sbase+4}, {nthreads*16}")

def gen_ln(name="ln_kernel", pf=True):
    a = Asm()
    kernel_header(a, name)
    a("s_cmp_ge_u32 s2, 256")
    a(f"s_cbranch_scc1 {name}_end")
    a("v_lshlrev_b32 v79, 4, v0")
    a("s_cmp_ge_u32 s2, 128")
    a(f"s_cbranch_scc0 {name}_ln")
    if pf:
        prefetch(a, 8, D * 3 * D * 2, 256, 512, 80, 32, "a")
        prefetch(a, 32, D * F * 2, 256, 512, 80, 40, "b")
    a(f"s_branch {name}_fin")
    a.raw(f"{name}_ln:")
    a("s_load_dwordx2 s[4:5], s[0:1], 0")
    a("s_load_dwordx2 s[6:7], s[0:1], 64")
    a("v_and_b32 v1, 63, v0")
    a("v_lshrrev_b32 v2, 6, v0")
    a("v_and_b32 v3, 15, v1")
    a("v_lshrrev_b32 v4, 4, v1")
    a("s_lshl_b32 s3, s2, 4")
    a("v_add_u32 v5, s3, v3")
    a("v_lshlrev_b32 v5, 11, v5")
    a("v_lshl_add_u32 v5, v2, 8, v5")
    a("v_lshl_add_u32 v5, v4, 3, v5")
    a("s_lshr_b32 s16, s2, 2")
    a("s_lshl_b32 s16, s16, 17")
    a("s_and_b32 s17, s2, 3")
    a("s_lshl_b32 s17, s17, 10")
    a("s_add_u32 s16, s16, s17")
    a("v_lshlrev_b32 v6, 14, v2")
    a("v_lshl_add_u32 v6, v1, 4, v6")
    a("v_add_u32 v6, s16, v6")
    a("v_mul_u32_u24 v8, 48, v3")
    a("v_lshl_add_u32 v7, v2, 2, v8")
    a("s_waitcnt lgkmcnt(0)")
    srd(a, 8, 4, S * D * 2)
    srd(a, 12, 6, 4 * MB, WS_XN)
    for i in range(4):
        for jj in range(2):
            r = 16 + 4 * i + 2 * jj
            a(f"buffer_load_dwordx2 v[{r}:{r+1}], v5, s[8:11], 0 offen offset:{i*64+jj*32}")
    npf = 0
    if pf:
        prefetch(a, 8, D * 3 * D * 2, 256, 512, 80, 32, "a")
        prefetch(a, 32, D * F * 2, 256, 512, 80, 40, "b")
        npf = 7
    a("s_mov_b32 s20, 4096")
    a("s_mov_b32 s21, 8192")
    a("s_mov_b32 s22, 12288")
    a("s_mov_b32 s23, 0xffff0000")
    a(f"s_waitcnt vmcnt({npf})")
    for k in range(16):
        a(f"v_lshlrev_b32 v{32+2*k}, 16, v{16+k}")
        a(f"v_and_b32 v{33+2*k}, s23, v{16+k}")
    def wave_reduce_and_share(src, slot):
        a(f"v_mov_b32 v10, v{src}")
        a("s_nop 1")
        a(f"v_permlane32_swap_b32 v{src}, v10")
        a("s_nop 1")
        a(f"v_add_f32 v{src}, v{src}, v10")
        a(f"v_mov_b32 v10, v{src}")
        a("s_nop 1")
        a(f"v_permlane16_swap_b32 v{src}, v10")
        a("s_nop 1")
        a(f"v_add_f32 v{src}, v{src}, v10")
        a(f"ds_write_b32 v7, v{src} offset:{slot}")
        a("s_waitcnt lgkmcnt(0)")
        a("s_barrier")
        a(f"ds_read_b128 v[64:67], v8 offset:{slot}")
        a(f"ds_read_b128 v[68:71], v8 offset:{slot+16}")
        a("s_waitcnt lgkmcnt(0)")
        a("v_add_f32 v64, v64, v65")
        a("v_add_f32 v66, v66, v67")
        a("v_add_f32 v68, v68, v69")
        a("v_add_f32 v70, v70, v71")
        a("v_add_f32 v64, v64, v66")
        a("v_add_f32 v68, v68, v70")
        a("v_add_f32 v9, v64, v68")
    for k in range(4):
        a(f"v_add_f32 v{72+k}, v{32+k}, v{36+k}")
    for k in range(8, 32):
        a(f"v_add_f32 v{72+(k%4)}, v{72+(k%4)}, v{32+k}")
    a("v_add_f32 v72, v72, v73")
    a("v_add_f32 v74, v74, v75")
    a("v_add_f32 v72, v72, v74")
    wave_reduce_and_share(72, 0)
    a("v_mul_f32 v11, 0x3a800000, v9")
    for k in range(4):
        a(f"v_sub_f32 v76, v{32+k}, v11")
        a(f"v_mul_f32 v{72+k}, v76, v76")
    for k in range(4, 32):
        a(f"v_sub_f32 v76, v{32+k}, v11")
        a(f"v_fmac_f32 v{72+(k%4)}, v76, v76")
    a("v_add_f32 v72, v72, v73")
    a("v_add_f32 v74, v74, v75")
    a("v_add_f32 v72, v72, v74")
    wave_reduce_and_share(72, 1024)
    a("v_mul_f32 v12, 0x3a800000, v9")
    a("v_cvt_pk_bf16_f32 v13, v11, v12")
    a("s_nop 0")
    a("v_lshlrev_b32 v11, 16, v13")
    a("v_and_b32 v12, s23, v13")
    a("v_add_f32 v12, 0x3727c5ac, v12")
    a("v_cvt_pk_bf16_f32 v12, v12, v12")
    a("s_nop 0")
    a("v_and_b32 v12, s23, v12")
    a("v_sqrt_f32 v12, v12")
    a("s_nop 0")
    a("v_cvt_pk_bf16_f32 v12, v12, v12")
    a("s_nop 0")
    a("v_and_b32 v12, s23, v12")
    a("v_rcp_f32 v14, v12")
    a("s_nop 0")
    for k in range(16):
        x0, x1 = 32 + 2 * k, 33 + 2 * k
        a(f"v_sub_f32 v{x0}, v{x0}, v11")
        a(f"v_sub_f32 v{x1}, v{x1}, v11")
        a(f"v_cvt_pk_bf16_f32 v76, v{x0}, v{x1}")
        a("s_nop 0")
        a(f"v_lshlrev_b32 v{x0}, 16, v76")
        a(f"v_and_b32 v{x1}, s23, v76")
        a(f"v_mul_f32 v77, v{x0}, v14")
        a(f"v_mul_f32 v78, v{x1}, v14")
        a(f"v_fma_f32 v{x0}, -v77, v12, v{x0}")
        a(f"v_fma_f32 v{x1}, -v78, v12, v{x1}")
        a(f"v_fmac_f32 v77, v{x0}, v14")
        a(f"v_fmac_f32 v78, v{x1}, v14")
        a(f"v_cvt_pk_bf16_f32 v{16+k}, v77, v78")
    so = ["0", "s20", "s21", "s22"]
    a("s_nop 1")
    for i in range(4):
        a(f"buffer_store_dwordx4 v[{16+4*i}:{19+4*i}], v6, s[12:15], {so[i]} offen")
    a.raw(f"{name}_fin:")
    a("s_waitcnt vmcnt(0)")
    a.raw(f"{name}_end:")
    a("s_endpgm")
    kernel_desc(a, name, 96, 96, 64)
    return a
```

```python
class Asm:
    def __init__(self):
        self.lines = []
    def __call__(self, s):
        for ln in s.split("\n"):
            ln = ln.strip()
            if ln:
                if ln.endswith(":") or ln.startswith("."):
                    self.lines.append(ln)
                else:
                    self.lines.append("    " + ln)
    def c(self, s):
        self.lines.append("    ; " + s)
    def raw(self, s):
        self.lines.append(s)
    def ext(self, other):
        self.lines += other.lines
    def text(self):
        return "\n".join(self.lines) + "\n"

def srd(a, dst, ptr_lo, size, off=0):
    if off:
        a(f"s_add_u32 s{dst}, s{ptr_lo}, {off}")
        a(f"s_addc_u32 s{dst+1}, s{ptr_lo+1}, 0")
    else:
        a(f"s_mov_b32 s{dst}, s{ptr_lo}")
        a(f"s_mov_b32 s{dst+1}, s{ptr_lo+1}")
    a(f"s_mov_b32 s{dst+2}, {size}")
    a(f"s_mov_b32 s{dst+3}, 0x00020000")

def kernel_header(a, name):
    a.raw(".text")
    a.raw(f".globl {name}")
    a.raw(".p2align 8")
    a.raw(f".type {name},@function")
    a.raw(f"{name}:")

def kernel_desc(a, name, vgpr, acc, sgpr=102):
    a.raw('.section .rodata,"a"')
    a.raw(".p2align 6")
    a.raw(f".amdhsa_kernel {name}")
    a.raw(f"  .amdhsa_next_free_vgpr {vgpr}")
    a.raw(f"  .amdhsa_next_free_sgpr {sgpr}")
    a.raw(f"  .amdhsa_accum_offset {acc}")
    a.raw("  .amdhsa_group_segment_fixed_size 0")
    a.raw("  .amdhsa_kernarg_size 72")
    a.raw("  .amdhsa_user_sgpr_count 2")
    a.raw("  .amdhsa_user_sgpr_kernarg_segment_ptr 1")
    a.raw("  .amdhsa_system_sgpr_workgroup_id_x 1")
    a.raw("  .amdhsa_float_denorm_mode_32 3")
    a.raw(".end_amdhsa_kernel")

class VmQ:
    def __init__(self): self.q = []
    def issue(self, tag): self.q.append(tag)
    def count_after(self, tags):
        last = -1
        for i, t in enumerate(self.q):
            if t in tags: last = i
        return len(self.q) - 1 - last
    def wait(self, a, tags):
        tags = set(tags)
        present = [t for t in tags if t in self.q]
        if not present:
            return
        n = self.count_after(tags)
        a(f"s_waitcnt vmcnt({min(n, 63)})")
        if n <= 63:
            last = len(self.q) - 1 - n
            self.q = self.q[last + 1:]
    def drain(self, a):
        a("s_waitcnt vmcnt(0)"); self.q = []

def is_vmem(ln):
    ln = ln.strip()
    return ln.startswith("buffer_") or ln.startswith("global_")

WS_STAMP = 48 << 20
class Stamps:
    S0 = 72
    def __init__(self, on): self.on = on; self.n = 0; self.names = []
    def __call__(self, a, name):
        if not self.on: return
        k = self.n; self.n += 1; self.names.append(name)
        assert k < 12, "too many stamps"
        a(f"s_memtime s[{self.S0+2*k}:{self.S0+1+2*k}]")
    def real(self, a, which):
        if not self.on: return
        a(f"s_memrealtime s[{96+2*which}:{97+2*which}]")
    def flush(self, a, wave_sreg, wsptr=28, kid=0):
        if not self.on: return
        a("s_waitcnt lgkmcnt(0)")
        a(f"s_add_u32 s40, s{wsptr}, {WS_STAMP + kid*65536*4}")
        a(f"s_addc_u32 s41, s{wsptr+1}, 0")
        a("s_mov_b32 s42, 0x40000")
        a("s_mov_b32 s43, 0x00020000")
        a("s_lshl_b32 s44, s2, 3")
        a(f"s_add_u32 s44, s44, s{wave_sreg}")
        a("s_lshl_b32 s44, s44, 6")
        a("v_mov_b32 v1, s44")
        a("s_mov_b64 exec, 1")
        for k in range(self.n):
            a(f"v_mov_b32 v2, s{self.S0+2*k}")
            a(f"buffer_store_dword v2, v1, s[40:43], 0 offen offset:{4*k}")
            a("s_nop 0")
        a("v_mov_b32 v2, s96")
        a("buffer_store_dword v2, v1, s[40:43], 0 offen offset:56")
        a("s_nop 0")
        a("v_mov_b32 v2, s98")
        a("buffer_store_dword v2, v1, s[40:43], 0 offen offset:60")
        a("s_mov_b64 exec, -1")
```

```python
from genlib import *
from layout import *
import struct, math
import k_gemm1 as G1
import k_att as AT

FL_QKV, FL_H, FL_O, FL_EX = 0, 32768, 65536, 98304
SC_ST = "sc0 sc1"
SC_LD = "sc1"

def place(mf, groups, fill, cap=2, start=0, avoid=None):
    lines = []
    for g in groups:
        if any("exec" in x for x in g):
            i0 = next(i for i, x in enumerate(g) if "exec" in x)
            i1 = max(i for i, x in enumerate(g) if "exec" in x)
            for x in g[:i0]: lines.append([x])
            lines.append(g[i0:i1 + 1])
            for x in g[i1 + 1:]: lines.append([x])
        else:
            for x in g: lines.append([x])
    n = len(mf)
    gaps = [g for g in range(start, n) if not (avoid and avoid(g))]
    if len(lines) > len(gaps): gaps = list(range(start, n))
    if not lines: return
    step = len(gaps) / len(lines)
    for i, l in enumerate(lines):
        fill.setdefault(gaps[min(int(i * step), len(gaps) - 1)], []).extend(l)

def emit(a, mf, fill, pre=None, q=None, tags=None):
    prev_m0 = False
    for i, m in enumerate(mf):
        if pre and i in pre:
            for ln in pre[i]: a(ln)
        a(m); prev_m0 = False
        for ln in fill.get(i, []):
            if prev_m0 and ln.rstrip().endswith("lds"): a("s_nop 0")
            a(ln)
            prev_m0 = " m0," in ln

NS1, NA1, NST1 = 8, 8, 32
def g1_a_ops(st):
    ia = st % NA1
    ops = []
    for t in range(4):
        r = G1.XF0 + ia * 16 + 4 * t
        g = [f"buffer_load_dwordx4 a[{r}:{r+3}], v1, s[8:11], s20 offen offset:{t*1024}"]
        if t == 3: g.append("s_add_u32 s20, s20, 4096")
        ops.append(g)
    return ops
def g1_b_ops(st):
    so = (st % NS1) * G1.STAGE
    ops = []
    for n in range(3):
        g = [f"s_add_u32 m0, s27, {so + n*1024}", f"buffer_load_dwordx4 v{2+n}, s[12:15], s21 offen lds"]
        if n == 2: g.append("s_add_u32 s21, s21, s23")
        ops.append(g)
    ops.append([f"s_add_u32 m0, s30, {so}", "s_mov_b64 exec, 0xffff", "buffer_load_dwordx4 v5, s[16:19], s22 offen lds",
                "s_mov_b64 exec, -1", f"s_add_u32 s22, s22, {32*7168}"])
    return ops
def g1_sched(s):
    if s < 0: return [("B", 0), ("A", 0), ("B", 1)]
    if s <= 4: l = [("A", 2*s+1), ("B", 2*s+2), ("A", 2*s+2), ("B", 2*s+3)]
    else: l = [("A", s + 6), ("B", s + 7)]
    return [(k, st) for k, st in l if st < NST1]

def g1_step(a, s, q, emit_code=True):
    b = a if emit_code else Asm()
    need = {("A", s)} | ({("B", s + 1)} if s + 1 < NST1 else set())
    q.wait(b, need)
    b("s_barrier")
    groups = []
    for k, st in g1_sched(s):
        groups += g1_a_ops(st) if k == "A" else g1_b_ops(st)
        for _ in range(4): q.issue((k, st))
    nxt = (s + 1) < NST1
    mf = [G1.mfma(u, t, s % NA1, s == 0) for u in range(13) for t in range(4)]
    fill = {}
    if nxt:
        for u in range(13):
            rd = list(G1.ldsread(None, u, (s + 1) % NS1))
            fill.setdefault(min(4*u + 3, 51), []).append(rd[0])
            fill.setdefault(min(4*u + 4, 51), []).append(rd[1])
    place(mf, groups, fill, start=1, avoid=lambda g: g % 4 in (3, 0))
    pre = {0: ["s_waitcnt lgkmcnt(8)"], 32: ["s_waitcnt lgkmcnt(8)" if nxt else "s_waitcnt lgkmcnt(0)"]}
    emit(b, mf, fill, pre)
    return b

def p1_main(a, name, st):
    q = VmQ()
    a("s_mov_b32 s20, 0"); a("s_mov_b32 s21, 0"); a("s_mov_b32 s22, 0")
    for k, stg in g1_sched(-1):
        for g in (g1_a_ops(stg) if k == "A" else g1_b_ops(stg)):
            for ln in g:
                a(ln)
                if " m0," in ln and "exec" not in "".join(g): a("s_nop 0")
        for _ in range(4): q.issue((k, stg))
    q.wait(a, {("B", 0)})
    a("s_barrier")
    for u in range(13):
        for ln in G1.ldsread(None, u, 0): a(ln)
        if u == 6: a("s_waitcnt lgkmcnt(4)")
    a("s_waitcnt lgkmcnt(0)")
    st(a, "g1pro")
    for s in range(8): g1_step(a, s, q)
    bodies = []
    for s in range(8, 24):
        t = Asm(); g1_step(t, s, q); bodies.append(t.text())
    for s in range(8): assert bodies[s] == bodies[s + 8], s
    a("s_mov_b32 s31, 2")
    a.raw(f"{name}_g1loop:")
    for s in range(8): a.lines += bodies[s].rstrip("\n").split("\n")
    a("s_sub_u32 s31, s31, 1")
    a("s_cmp_lg_u32 s31, 0")
    a(f"s_cbranch_scc1 {name}_g1loop")
    for s in range(24, 32): g1_step(a, s, q)

acc1 = G1.acc
def set_flag(a, name, tag, off_expr_sreg):
    a("s_cmp_lg_u32 s24, 0")
    a(f"s_cbranch_scc1 {name}_nf_{tag}")
    a("v_mov_b32 v10, 1")
    a("v_mov_b32 v11, 0")
    a("s_mov_b64 exec, 1")
    a(f"buffer_store_dword v10, v11, s[32:35], {off_expr_sreg} offen sc0 sc1")
    a("s_mov_b64 exec, -1")
    a.raw(f"{name}_nf_{tag}:")

def poll_spin(a, name, tag, voff, soff, vdst):
    a("s_mov_b32 s100, 0x40000")
    a.raw(f"{name}_poll_{tag}:")
    a(f"buffer_load_dword v{vdst}, v{voff}, s[32:35], {soff} offen sc0 sc1")
    a("s_sub_u32 s100, s100, 1")
    a("s_cmp_eq_u32 s100, 0")
    a(f"s_cbranch_scc1 {name}_pollx_{tag}")
    a("s_waitcnt vmcnt(0)")
    a(f"v_cmp_ne_u32 vcc, 1, v{vdst}")
    a("s_nop 1")
    a(f"s_cbranch_vccnz {name}_poll_{tag}")
    a.raw(f"{name}_pollx_{tag}:")

def check_or_spin(a, name, tag, voff, soff, vdst):
    a(f"v_cmp_ne_u32 vcc, 1, v{vdst}")
    a("s_nop 1")
    a(f"s_cbranch_vccz {name}_ok_{tag}")
    poll_spin(a, name, tag, voff, soff, vdst)
    a.raw(f"{name}_ok_{tag}:")

def silu8(a, regs, tmp):
    for k, r in enumerate(regs): a(f"v_mul_f32 v{tmp+k}, s36, v{r}")
    for k, r in enumerate(regs): a(f"v_exp_f32 v{tmp+k}, v{tmp+k}")
    for k, r in enumerate(regs): a(f"v_add_f32 v{tmp+k}, 1.0, v{tmp+k}")
    for k, r in enumerate(regs): a(f"v_rcp_f32 v{tmp+k}, v{tmp+k}")
    for k, r in enumerate(regs): a(f"v_mul_f32 v{r}, v{r}, v{tmp+k}")

def h_tile_compute(a, t):
    for p in range(0, 6, 2):
        A, B = acc1(6 + p, t), acc1(7 + p, t)
        silu8(a, [A, A+1, A+2, A+3, B, B+1, B+2, B+3], 16)
        a(f"v_cvt_pk_bf16_f32 v{A}, v{A}, v{A+1}")
        a(f"v_cvt_pk_bf16_f32 v{A+1}, v{A+2}, v{A+3}")
        a(f"v_cvt_pk_bf16_f32 v{A+2}, v{B}, v{B+1}")
        a(f"v_cvt_pk_bf16_f32 v{A+3}, v{B+2}, v{B+3}")
def h_single_compute(a, t0):
    A, B = acc1(12, t0), acc1(12, t0 + 1)
    silu8(a, [A, A+1, A+2, A+3, B, B+1, B+2, B+3], 16)
    a(f"v_cvt_pk_bf16_f32 v{A}, v{A}, v{A+1}")
    a(f"v_cvt_pk_bf16_f32 v{A+1}, v{A+2}, v{A+3}")
    a(f"v_cvt_pk_bf16_f32 v{B}, v{B}, v{B+1}")
    a(f"v_cvt_pk_bf16_f32 v{B+1}, v{B+2}, v{B+3}")

def p1_epilogue_qkv(a, q):
    srd(a, 8, 28, 4 * MB, WS_Q)
    srd(a, 12, 28, 4 * MB, WS_K)
    srd(a, 16, 28, 4 * MB, WS_V)
    srd(a, 20, 28, H_BYTES, WS_H)
    srd(a, 32, 28, 131072, WS_FLAGS)
    a("v_and_b32 v2, 15, v0")
    a("v_lshrrev_b32 v3, 4, v0")
    a("v_lshlrev_b32 v3, 9, v3")
    a("s_lshl_b32 s3, s25, 3")
    a("s_lshl_b32 s30, s24, 1")
    a("s_add_u32 s3, s3, s30")
    a("s_mov_b32 s31, s3")
    a("s_lshl_b32 s30, s26, 17")
    a("s_lshl_b32 s37, s3, 11")
    a("s_add_u32 s30, s30, s37")
    a("v_lshl_add_u32 v4, v2, 4, v3")
    a("v_add_u32 v4, s30, v4")
    a("v_and_b32 v5, 7, v2")
    a("v_lshrrev_b32 v6, 3, v2")
    a("v_lshl_add_u32 v5, v6, 4, v5")
    a("v_lshl_add_u32 v5, v5, 4, v3")
    a("v_add_u32 v5, s30, v5")
    a(f"s_mul_i32 s37, s3, {112*2048}")
    a("s_mul_i32 s38, s26, 7")
    a("s_add_u32 s38, s38, 1")
    a("s_lshr_b32 s38, s38, 1")
    a("s_lshl_b32 s38, s38, 11")
    a("s_add_u32 s37, s37, s38")
    a("v_lshl_add_u32 v6, v2, 4, v3")
    a("v_add_u32 v6, s37, v6")
    a("s_and_b32 s38, s26, 1")
    a("s_cmp_eq_u32 s38, 0")
    a("s_mov_b32 s39, 6144")
    a("s_cselect_b32 s38, s39, -2040")
    a("v_add_u32 v7, s38, v6")
    qs = struct.unpack("<I", struct.pack("<f", math.log2(math.e) / math.sqrt(32.0)))[0]
    a(f"s_mov_b32 s37, {hex(qs)}")
    a("s_mov_b32 s36, 0xbfb8aa3b")
    acc = acc1
    for t in range(4):
        b = 16 + 4 * (t & 1)
        for uu in range(2):
            for r in range(4):
                a(f"v_mul_f32 v{acc(uu,t,r)}, s37, v{acc(uu,t,r)}")
        for uu in range(2):
            a(f"v_cvt_pk_bf16_f32 v{b+2*uu}, v{acc(uu,t,0)}, v{acc(uu,t,1)}")
            a(f"v_cvt_pk_bf16_f32 v{b+1+2*uu}, v{acc(uu,t,2)}, v{acc(uu,t,3)}")
        a(f"buffer_store_dwordx4 v[{b}:{b+3}], v4, s[8:11], 0 offen offset:{(t>>1)*2048 + (t&1)*256} {SC_ST}"); q.issue("qkv")
    for t in range(4):
        b = 24 + 4 * (t & 1)
        for uu in range(2):
            a(f"v_cvt_pk_bf16_f32 v{b+2*uu}, v{acc(2+uu,t,0)}, v{acc(2+uu,t,1)}")
            a(f"v_cvt_pk_bf16_f32 v{b+1+2*uu}, v{acc(2+uu,t,2)}, v{acc(2+uu,t,3)}")
        a(f"buffer_store_dwordx4 v[{b}:{b+3}], v5, s[12:15], 0 offen offset:{(t>>1)*2048 + (t&1)*128} {SC_ST}"); q.issue("qkv")
    for bb in range(2):
        for td in range(2):
            b = 32 + 4 * td
            for tt in range(2):
                t = 2 * bb + tt
                a(f"v_cvt_pk_bf16_f32 v{b+2*tt}, v{acc(4+td,t,0)}, v{acc(4+td,t,1)}")
                a(f"v_cvt_pk_bf16_f32 v{b+1+2*tt}, v{acc(4+td,t,2)}, v{acc(4+td,t,3)}")
            a(f"buffer_store_dwordx4 v[{b}:{b+3}], v4, s[16:19], 0 offen offset:{bb*2048 + td*256} {SC_ST}"); q.issue("qkv")

def h_stores(a, q):
    acc = acc1
    a(f"s_mov_b32 s37, {112*2048}")
    a("s_mov_b32 s38, 4096")
    a(f"s_mov_b32 s39, {4096 + 112*2048}")
    for t in range(4):
        so = "0" if t < 2 else "s37"
        for p in range(0, 6, 2):
            b = acc(6 + p, t)
            off = (p // 2) * 2048 + (t & 1) * 256
            if off >= 4096:
                a(f"buffer_store_dwordx4 v[{b}:{b+3}], v6, s[20:23], {'s38' if t < 2 else 's39'} offen offset:{off-4096} {SC_ST}")
            else:
                a(f"buffer_store_dwordx4 v[{b}:{b+3}], v6, s[20:23], {so} offen offset:{off} {SC_ST}")
            q.issue("h")
        b = acc(12, t)
        a(f"buffer_store_dwordx2 v[{b}:{b+1}], v7, s[20:23], {so} offen offset:{(t&1)*256} {SC_ST}"); q.issue("h")

SLOT = 32768
def att_dma_ops():
    ops = []
    for kv in range(2):
        for n in range(4):
            g = []
            if n == 0: g += [f"s_add_u32 m0, s33x, {kv*16384}".replace("s33x", "s39"), "s_nop 0"]
            g.append(f"buffer_load_dwordx4 v9, s[{8+4*kv}:{11+4*kv}], s38 offen offset:{n*1024} {SC_LD} lds")
            ops.append(g)
    return ops

def att_early(a, q):
    a("s_lshl_b32 s3, s26, 17")
    for base, off in ((8, WS_K), (12, WS_V)):
        a(f"s_add_u32 s{base}, s28, {off}")
        a(f"s_addc_u32 s{base+1}, s29, 0")
        a(f"s_add_u32 s{base}, s{base}, s3")
        a(f"s_addc_u32 s{base+1}, s{base+1}, 0")
        a(f"s_mov_b32 s{base+2}, 131072")
        a(f"s_mov_b32 s{base+3}, 0x00020000")
    srd(a, 16, 28, 4 * MB, WS_Q)
    a("v_lshlrev_b32 v8, 4, v0")
    a("s_lshl_b32 s30, s24, 12")
    a("v_add_u32 v9, s30, v8")
    a("s_lshl_b32 s38, s31, 11")
    a("s_add_u32 s38, s38, s3")
    for qt in range(2):
        for uu in range(2):
            r = AT.QF + 8 * qt + 4 * uu
            a(f"buffer_load_dwordx4 a[{r}:{r+3}], v8, s[16:19], s38 offen offset:{qt*2048+uu*1024} {SC_LD}"); q.issue("attld")
    for sgi in range(2):
        a(f"s_add_u32 s39, s30, {sgi*SLOT}")
        a(f"s_mov_b32 s38, {sgi*16384}")
        for g in att_dma_ops():
            for ln in g: a(ln)
            q.issue("attld")

def att_init(a):
    ONES = AT.ONES
    a("v_and_b32 v4, 3, v0")
    a("v_bfe_u32 v5, v0, 2, 1")
    a("v_bfe_u32 v10, v0, 4, 1")
    a("v_xor_b32 v5, v5, v10")
    a("v_or_b32 v4, v4, v5")
    a("v_cmp_eq_u32 vcc, 0, v4")
    a("v_mov_b32 v5, 0x3f803f80")
    a("s_nop 0")
    for k in range(4): a(f"v_cndmask_b32 v{ONES+k}, 0, v5, vcc")
    for r in list(range(AT.OA, AT.OA + 32)) + list(range(AT.LA, AT.LA + 8)) + list(range(AT.VF, AT.VF + 8)):
        a(f"v_accvgpr_write_b32 a{r}, 0")
    for r in range(AT.PB, AT.PB + 8): a(f"v_mov_b32 v{r}, 0")
    a("v_mov_b32 v4, v8")
    a(f"v_add_u32 v5, {SLOT}, v8")

def att_prolog(a):
    SA, SB, NA_, NB_, QF = AT.SA, AT.SB, AT.NA_, AT.NB_, AT.QF
    for ln in AT.kread(4, 0): a(ln)
    a("s_waitcnt lgkmcnt(0)")
    a(AT.s_mfma(SA, QF, "0", 0)); a(AT.s_mfma(SA, QF, "0", 1))
    a(AT.s_mfma(SB, QF + 8, "0", 0)); a(AT.s_mfma(SB, QF + 8, "0", 1))
    a("s_nop 15")
    for S_, N in ((SA, NA_), (SB, NB_)):
        a(f"v_max3_f32 v6, v{S_}, v{S_+1}, v{S_+2}")
        for k in range(3, 15, 2): a(f"v_max3_f32 v6, v6, v{S_+k}, v{S_+k+1}")
        a(f"v_max_f32 v6, v6, v{S_+15}")
        a("v_mov_b32 v7, v6")
        a("s_nop 1")
        a("v_permlane32_swap_b32 v6, v7")
        a("s_nop 1")
        a("v_max_f32 v6, v6, v7")
        a("v_xor_b32 v6, 0x80000000, v6")
        for k in range(16): a(f"v_mov_b32 v{N+k}, v6")
    a("s_nop 1")
    a(AT.s_mfma(SA, QF, NA_, 0)); a(AT.s_mfma(SA, QF, NA_, 1))
    a("s_nop 15")

def att_phase(a, SX, PX, SY, QY, NY, OY, LY, PY, lds2, lds4, wait, extra):
    e = lambda i: a(f"v_exp_f32 v{SX+i}, v{SX+i}")
    c = lambda i: a(f"v_cvt_pk_bf16_f32 v{PX+i}, v{SX+2*i}, v{SX+2*i+1}")
    def ex(p):
        for ln in extra.get(p, []): a(ln)
    if wait: a(wait)
    a(AT.pv_mfma(OY, PY, 0)); ex(0)
    e(0); e(1); e(2)
    a(AT.pv_mfma(OY, PY, 1))
    e(3)
    for ln in lds2: a(ln)
    e(4); e(5)
    a(AT.s_mfma(SY, QY, NY, 0)); ex(1)
    e(6); e(7); c(0); c(1)
    a(AT.s_mfma(SY, QY, NY, 1))
    e(8)
    for ln in lds4: a(ln)
    e(9); c(2); c(3)
    a(AT.l_mfma(LY, PY, 0)); ex(2)
    e(10); e(11)
    a(AT.l_mfma(LY, PY, 1))
    e(12); e(13); c(4); e(14); e(15); c(5); c(6); c(7)

def att_stage_body(a, groups):
    SA, SB, PA, PB, QF = AT.SA, AT.SB, AT.PA, AT.PB, AT.QF
    slots = [(b, ph, p) for b in range(8) for ph in range(2) for p in range(3)]
    ex = {}
    if groups:
        step = min(len(slots) / len(groups), 3.0)
        for i, g in enumerate(groups): ex.setdefault(slots[int(i * step)], []).extend(g)
    for b in range(8):
        exA = {p: ex.get((b, 0, p), []) for p in range(3)}
        exB = {p: ex.get((b, 1, p), []) for p in range(3)}
        nk = AT.kread(4, (b + 1) * 2048) if b < 7 else AT.kread(5, 0)
        nv = AT.vread(4, 16384 + b * 2048)
        att_phase(a, SA, PA, SB, QF + 8, AT.NB_, AT.OB, AT.LB, PB, nv, nk, None, exA)
        att_phase(a, SB, PB, SA, QF, AT.NA_, AT.OA, AT.LA, PA, [], [], "s_waitcnt lgkmcnt(0)", exB)

def att_rotate(a):
    a("v_mov_b32 v4, v5")
    a("s_mov_b32 s3, s37")
    a(f"s_add_u32 s37, s37, {SLOT}")
    a(f"s_cmp_ge_u32 s37, {3*SLOT}")
    a("s_cselect_b32 s37, 0, s37")
    a("v_add_u32 v5, s3, v8")
    a("s_add_u32 s38, s38, 16384")
    a("s_add_u32 s36, s36, 1")

def att_epilogue(a, q):
    a(AT.pv_mfma(AT.OB, AT.PB, 0)); a(AT.pv_mfma(AT.OB, AT.PB, 1))
    a(AT.l_mfma(AT.LB, AT.PB, 0)); a(AT.l_mfma(AT.LB, AT.PB, 1))
    srd(a, 20, 28, 4 * MB, WS_O)
    a("s_lshl_b32 s38, s31, 16")
    a("s_lshl_b32 s3, s26, 11")
    a("s_add_u32 s38, s38, s3")
    a("s_add_u32 s39, s38, 65536")
    a("s_nop 15")
    for qt, (O, L) in enumerate(((AT.OA, AT.LA), (AT.OB, AT.LB))):
        a(f"v_accvgpr_read_b32 v6, a{L}")
        a("s_nop 0")
        a("v_rcp_f32 v7, v6")
        for k in range(16): a(f"v_accvgpr_read_b32 v{16+k}, a{O+k}")
        for k in range(16): a(f"v_mul_f32 v{16+k}, v{16+k}, v7")
        for k in range(8): a(f"v_cvt_pk_bf16_f32 v{32+8*qt+k}, v{16+2*k}, v{17+2*k}")
        so = "s38" if qt == 0 else "s39"
        for uu in range(2):
            r = 32 + 8 * qt + 4 * uu
            a(f"buffer_store_dwordx4 v[{r}:{r+3}], v8, s[20:23], {so} offen offset:{uu*1024} {SC_ST}"); q.issue("o")

V_H, V_O, V_D0, V_D1, V_DO, V_EX = 100, 101, 102, 103, 104, 105
VB_F, VB_O = 108, 124
ACC3 = 136
XR = 200
WF3, XF3 = 72, 128
SLOTBASE = [65536, 98304, 131072, 32768]
WIN = [32768, 98304]
NF, NO = 14, 8
NSTG = NF + NO
DB3, DA3 = 3, 2
def acc3(u, t, r=0): return ACC3 + (u * 2 + t) * 4 + r
def isO(s): return s >= NF
def slotwin(slot):
    b = SLOTBASE[slot]
    w = 0 if b < WIN[1] else 1
    return w, b - WIN[w]

def p3_setup(a):
    a("s_and_b32 s3, s2, 7")
    a("s_lshr_b32 s44, s2, 3")
    a("s_and_b32 s50, s3, 1")
    a("s_lshr_b32 s51, s3, 1")
    a("s_lshl_b32 s51, s51, 2")
    a("s_and_b32 s45, s44, 3")
    a("s_add_u32 s51, s51, s45")
    a("s_lshr_b32 s52, s44, 2")
    a("v_and_b32 v11, 15, v0")
    a("v_lshrrev_b32 v12, 4, v0")
    a("v_lshlrev_b32 v13, 9, v12")
    a("v_lshl_add_u32 v13, v11, 4, v13")
    a("s_lshl_b32 s44, s51, 2")
    a("s_add_u32 s44, s44, s24")
    a(f"s_mul_i32 s45, s44, {112*2048}")
    a(f"v_add_u32 v{V_H}, s45, v13")
    a("s_lshl_b32 s45, s44, 16")
    a(f"v_add_u32 v{V_O}, s45, v13")
    a("v_lshrrev_b32 v13, 4, v0")
    a("v_bfe_u32 v14, v0, 1, 3")
    a("v_and_b32 v15, 1, v0")
    a("v_lshlrev_b32 v15, 4, v15")
    a("s_lshl_b32 s45, s52, 8")
    a("s_lshl_b32 s46, s24, 3")
    for n in range(2):
        a(f"v_add_u32 v10, {4*n}, v13")
        a("v_xor_b32 v11, v14, v10")
        a("v_lshrrev_b32 v12, 2, v11")
        a("v_xor_b32 v12, s50, v12")
        a("v_and_b32 v11, 3, v11")
        a("v_lshl_add_u32 v11, v11, 5, v15")
        a("v_lshl_add_u32 v11, v12, 7, v11")
        a("v_add_u32 v10, s46, v10")
        a("v_lshl_add_u32 v11, v10, 11, v11")
        a(f"v_add_u32 v{V_D0+n}, s45, v11")
    a("v_lshrrev_b32 v13, 3, v0")
    a("v_add_u32 v13, s46, v13")
    a("v_bfe_u32 v14, v13, 1, 2")
    a("v_bfe_u32 v12, v0, 1, 2")
    a("v_xor_b32 v14, v14, v12")
    a("v_lshl_add_u32 v14, v14, 5, v15")
    a("v_lshl_add_u32 v14, v13, 11, v14")
    a("s_lshl_b32 s47, s50, 7")
    a("s_add_u32 s47, s47, s45")
    a(f"v_add_u32 v{V_DO}, s47, v14")
    a("v_lshrrev_b32 v13, 2, v0")
    a("v_and_b32 v14, 3, v0")
    a("v_lshlrev_b32 v14, 3, v14")
    a("v_and_b32 v15, 7, v13")
    for u in range(8):
        a(f"v_xor_b32 v10, {u}, v15")
        a("v_lshl_add_u32 v10, v10, 5, v14")
        a("v_lshl_add_u32 v10, v13, 8, v10")
        a(f"v_add_u32 v{VB_F+u}, {WIN[0]}, v10")
        a(f"v_add_u32 v{VB_F+8+u}, {WIN[1]}, v10")
    a("v_bfe_u32 v15, v13, 1, 2")
    a("v_bfe_u32 v11, v0, 5, 1")
    a("v_bfe_u32 v12, v0, 4, 1")
    a("v_bfe_u32 v13, v0, 2, 2")
    a("v_lshl_add_u32 v13, v12, 2, v13")
    a("v_lshl_add_u32 v13, v11, 4, v13")
    for u in range(4):
        a(f"v_xor_b32 v10, {u}, v15")
        a("v_lshl_add_u32 v10, v10, 5, v14")
        a("v_lshl_add_u32 v10, v13, 7, v10")
        a(f"v_add_u32 v{VB_O+u}, {WIN[0]}, v10")
        a(f"v_add_u32 v{VB_O+4+u}, {WIN[1]}, v10")
    a(f"v_lshlrev_b32 v{V_EX}, 4, v0")
    a("s_lshl_b32 s53, s24, 11")
    a("s_lshl_b32 s54, s24, 10")
    a(f"s_mul_i32 s44, s50, {56*2048}")
    a("s_add_u32 s46, s44, 4096")
    a(f"s_mul_i32 s48, s50, {56*65536}")
    a("s_mov_b32 s45, 0")
    a("s_mov_b32 s47, 4096")
    a("s_mov_b32 s49, 0")
    srd(a, 64, 28, H_BYTES, WS_H)
    srd(a, 68, 4, F * D * 2)

def p3_reads(u, slot, kk, o):
    w, so = slotwin(slot)
    out = []
    for jj in range(2):
        dst = WF3 + 4 * u + 2 * jj
        if o: base, off = VB_O + 4 * w + u, so + kk * 4096 + jj * 1024
        else: base, off = VB_F + 8 * w + u, so + kk * 8192 + jj * 4096
        out.append(f"ds_read_b64_tr_b16 a[{dst}:{dst+1}], v{base} offset:{off}")
    return out
def p3_a_ops(stage):
    o = isO(stage)
    ia = stage % 4
    ops = []
    for kk in range(4):
        for t in range(2):
            r = XF3 + (ia * 4 + kk) * 8 + 4 * t
            sreg = {(False, 0): "s44", (False, 1): "s46", (True, 0): "s45", (True, 1): "s47"}[(o, kk >> 1)]
            areg, asrd = (f"v{V_O}", "s[8:11]") if o else (f"v{V_H}", "s[64:67]")
            ops.append([f"buffer_load_dwordx4 a[{r}:{r+3}], {areg}, {asrd}, {sreg} offen offset:{(kk&1)*2048 + t*256} {SC_LD}"])
    adv = ("s45", "s47") if o else ("s44", "s46")
    ops[-1] += [f"s_add_u32 {adv[0]}, {adv[0]}, 8192", f"s_add_u32 {adv[1]}, {adv[1]}, 8192"]
    return ops
def p3_b_ops(stage):
    sb = SLOTBASE[stage % 4]
    ops = []
    if isO(stage):
        for kk in range(4):
            ops.append([f"s_add_u32 m0, s54, {sb + kk*4096}", f"buffer_load_dwordx4 v{V_DO}, s[12:15], s49 offen lds", "s_add_u32 s49, s49, 65536"])
    else:
        for kk in range(4):
            ops.append([f"s_add_u32 m0, s53, {sb + kk*8192}", f"buffer_load_dwordx4 v{V_D0}, s[68:71], s48 offen lds"])
            ops.append([f"s_add_u32 m0, s53, {sb + kk*8192 + 1024}", f"buffer_load_dwordx4 v{V_D1}, s[68:71], s48 offen lds", "s_add_u32 s48, s48, 65536"])
    return ops
def p3_early_groups(q):
    groups = []
    for k, stg in [("B", 0), ("A", 0), ("B", 1), ("A", 1), ("B", 2)]:
        ops = p3_b_ops(stg) if k == "B" else p3_a_ops(stg)
        for g in ops:
            g2 = []
            for ln in g:
                g2.append(ln)
                if " m0," in ln: g2.append("s_nop 0")
            groups.append(g2); q.issue((k, stg))
    return groups

def p3_stage(a, s, q, name, top=None, extra_groups=None, extra_tags=None):
    need = {("A", s)} | ({("B", s + 1)} if s + 1 < NSTG else set())
    if s == 0: need.add(("B", 0))
    q.wait(a, need)
    a("s_barrier")
    if top: top(a)
    if s == 0:
        for u in range(8):
            for ln in p3_reads(u, 0, 0, False): a(ln)
        a("s_waitcnt lgkmcnt(0)")
    groups = []
    if s + DA3 < NSTG:
        for g in p3_a_ops(s + DA3): groups.append(g); q.issue(("A", s + DA3))
    if s + DB3 < NSTG:
        for g in p3_b_ops(s + DB3): groups.append(g); q.issue(("B", s + DB3))
    for g, t in zip(extra_groups or [], extra_tags or []):
        groups.append(g); q.issue(t)
    o = isO(s)
    nt = 4 if o else 8
    per = [[] for _ in range(4)]
    for i, g in enumerate(groups): per[i * 4 // max(len(groups), 1)].append(g)
    for kk in range(4):
        if kk < 3: nslot, nkk, nO, has = s % 4, kk + 1, o, True
        else: nslot, nkk, nO, has = (s + 1) % 4, 0, isO(s + 1), (s + 1) < NSTG
        ntn = 4 if nO else 8
        mf = []
        for u in range(nt):
            for t in range(2):
                d = acc3(u, t)
                x = XF3 + ((s % 4) * 4 + kk) * 8 + 4 * t
                w = WF3 + 4 * u
                c = "0" if (s == 0 and kk == 0) else f"v[{d}:{d+3}]"
                mf.append(f"v_mfma_f32_16x16x32_bf16 v[{d}:{d+3}], a[{w}:{w+3}], a[{x}:{x+3}], {c}")
        fill = {}
        if has:
            for u in range(ntn):
                rd = p3_reads(u, nslot, nkk, nO)
                fill.setdefault(min(2*u + 1, len(mf) - 1), []).append(rd[0])
                fill.setdefault(min(2*u + 2, len(mf) - 1), []).append(rd[1])
        place(mf, per[kk], fill, start=0)
        if nt == 8: pre = {0: ["s_waitcnt lgkmcnt(8)"], 8: ["s_waitcnt lgkmcnt(7)" if has else "s_waitcnt lgkmcnt(0)"]}
        else: pre = {0: ["s_waitcnt lgkmcnt(4)"], 4: ["s_waitcnt lgkmcnt(3)" if has else "s_waitcnt lgkmcnt(0)"]}
        emit(a, mf, fill, pre)

def p3_main(a, name, q, st):
    srd(a, 8, 28, 4 * MB, WS_O)
    srd(a, 12, 6, D * D * 2)
    srd(a, 16, 28, 8 * MB, WS_EX)
    a("s_lshl_b32 s57, s2, 15")
    a("s_lshl_b32 s3, s24, 13")
    a("s_add_u32 s57, s57, s3")
    a("s_add_u32 s58, s57, 4096")
    a("s_xor_b32 s59, s2, 1")
    a("s_lshl_b32 s60, s59, 7")
    a(f"s_add_u32 s60, s60, {FL_EX}")
    a("s_lshl_b32 s59, s59, 15")
    a("s_add_u32 s59, s59, s3")
    a("s_add_u32 s61, s59, 4096")
    a("s_lshl_b32 s56, s2, 7")
    a(f"s_add_u32 s55, s56, {FL_O}")
    a(f"s_add_u32 s56, s56, {FL_EX}")
    a("v_and_b32 v10, 31, v0")
    a("s_lshr_b32 s3, s51, 1")
    a("s_lshl_b32 s3, s3, 5")
    a("v_add_u32 v10, s3, v10")
    a("v_lshlrev_b32 v106, 7, v10")
    a(f"s_mov_b32 s62, {FL_O}")
    a("v_mov_b32 v107, 0")
    for s in range(NSTG):
        top = None; eg = []; et = []
        if s == 2:
            top = lambda a: set_flag(a, name, "o", "s55")
        if s == 9:
            eg = [[f"buffer_load_dword v12, v106, s[32:35], s62 offen sc0 sc1"]]; et = ["oflag"]
        if s == 11:
            q.wait(a, {"oflag"})
            check_or_spin(a, name, "o", 106, "s62", 12)
        if s == NF:
            eg = [[f"buffer_store_dwordx4 v[{acc3(4,0)+4*k}:{acc3(4,0)+4*k+3}], v{V_EX}, s[16:19], {'s57' if k < 4 else 's58'} offen offset:{(k&3)*1024} sc0 sc1"] for k in range(8)]
            et = ["ex"] * 8
        if s == NF + 3:
            q.wait(a, {"ex"})
            top = lambda a: set_flag(a, name, "ex", "s56")
        if s == NSTG - 4:
            eg = [[f"buffer_load_dword v12, v107, s[32:35], s60 offen sc0 sc1"]]; et = ["exflag"]
        if s == NSTG - 2:
            q.wait(a, {"exflag"})
            check_or_spin(a, name, "ex", 107, "s60", 12)
            x_setup(a)
            eg = [[f"buffer_load_dwordx4 v[{acc3(4,0)+4*k}:{acc3(4,0)+4*k+3}], v{V_EX}, s[16:19], {'s59' if k < 4 else 's61'} offen offset:{(k&3)*1024} sc0 sc1"] for k in range(8)]
            et = ["exd"] * 8
            for t in range(2):
                for p in range(2):
                    r = XR + (t * 2 + p) * 4
                    eg.append([f"buffer_load_dwordx4 v[{r}:{r+3}], v1, s[64:67], {'0' if t == 0 else 's63'} offen offset:{p*64}"]); et.append("x")
        if st and s in (8, NF, NSTG - 1): st(a, f"p3s{s}")
        p3_stage(a, s, q, name, top, eg, et)

def x_setup(a):
    srd(a, 64, 40, S * D * 2)
    srd(a, 68, 42, S * D * 2)
    a("v_and_b32 v1, 15, v0")
    a("s_lshl_b32 s3, s51, 7")
    a("s_lshl_b32 s30, s24, 5")
    a("s_add_u32 s3, s3, s30")
    a("v_add_u32 v1, s3, v1")
    a("v_lshlrev_b32 v1, 11, v1")
    a("v_bfe_u32 v2, v0, 4, 1")
    a("v_bfe_u32 v3, v0, 5, 1")
    a("v_lshl_add_u32 v1, v2, 5, v1")
    a("v_lshl_add_u32 v1, v3, 4, v1")
    a("s_lshl_b32 s30, s52, 8")
    a("s_lshl_b32 s3, s50, 7")
    a("s_add_u32 s30, s30, s3")
    a("v_add_u32 v1, s30, v1")
    a("s_mov_b32 s63, 32768")

def p3_epilogue(a, q):
    a("s_mov_b32 s30, 0xffff0000")
    q.drain(a)
    a("s_nop 7")
    for k in range(32): a(f"v_add_f32 v{ACC3+k}, v{ACC3+k}, v{ACC3+32+k}")
    for t in range(2):
        for p in range(2):
            for r in range(4): a(f"v_permlane16_swap_b32 v{acc3(2*p,t,r)}, v{acc3(2*p+1,t,r)}")
    for t in range(2):
        for p in range(2):
            ua, ub = 2 * p, 2 * p + 1
            xr = XR + (t * 2 + p) * 4
            vals = [acc3(ua, t, r) for r in range(4)] + [acc3(ub, t, r) for r in range(4)]
            for k in range(4):
                a(f"v_lshlrev_b32 v12, 16, v{xr+k}")
                a(f"v_and_b32 v13, s30, v{xr+k}")
                a(f"v_add_f32 v12, v12, v{vals[2*k]}")
                a(f"v_add_f32 v13, v13, v{vals[2*k+1]}")
                a(f"v_cvt_pk_bf16_f32 v{xr+k}, v12, v13")
            a(f"buffer_store_dwordx4 v[{xr}:{xr+3}], v1, s[68:71], {'0' if t == 0 else 's63'} offen offset:{p*64}")

def gen_main(name="main_kernel", stamps=False):
    a = Asm()
    st = Stamps(stamps)
    kernel_header(a, name)
    a("s_cmp_ge_u32 s2, 256")
    a(f"s_cbranch_scc1 {name}_end")
    st.real(a, 0); st(a, "start")
    G1.gemm1_setup(a, name)
    p1_main(a, name, st)
    st(a, "g1main")
    q = VmQ()
    a("s_load_dwordx2 s[4:5], s[0:1], 40")
    a("s_load_dwordx2 s[6:7], s[0:1], 16")
    a("s_load_dwordx2 s[40:41], s[0:1], 0")
    a("s_load_dwordx2 s[42:43], s[0:1], 48")
    p1_epilogue_qkv(a, q)
    for t in range(2): h_tile_compute(a, t)
    h_single_compute(a, 0)
    q.drain(a)
    a("s_barrier")
    a("s_lshl_b32 s3, s2, 7")
    set_flag(a, name, "qkv", "s3")
    for t in range(2, 4): h_tile_compute(a, t)
    h_single_compute(a, 2)
    a("v_and_b32 v10, 7, v0")
    a("v_lshlrev_b32 v10, 5, v10")
    a("s_and_b32 s3, s2, 31")
    a("v_add_u32 v10, s3, v10")
    a("v_lshlrev_b32 v10, 7, v10")
    poll_spin(a, name, "qkv", 10, "0", 11)
    st(a, "qkvok")
    att_early(a, q)
    h_stores(a, q)
    a("s_waitcnt lgkmcnt(0)")
    p3_setup(a)
    att_init(a)
    a("s_lshl_b32 s3, s24, 10")
    a("v_add_u32 v13, s3, v8")
    a(f"s_mul_i32 s62, s2, {F*D*2//256}")
    a(f"s_mul_i32 s63, s2, {D*D*2//256}")
    srd(a, 56, 6, D * D * 2)
    a("v_bfe_u32 v14, v0, 1, 3")
    a("v_and_b32 v15, 1, v0")
    a("s_lshl_b32 s3, s50, 1")
    a("v_add_u32 v15, s3, v15")
    a("s_lshr_b32 s3, s51, 1")
    a("s_lshl_b32 s3, s3, 2")
    a("v_add_u32 v15, s3, v15")
    a("v_lshl_add_u32 v14, v15, 3, v14")
    a("v_lshlrev_b32 v14, 7, v14")
    a(f"s_mov_b32 s55, {FL_H}")
    q.wait(a, {"attld"})
    a("s_barrier")
    st(a, "attld")
    att_prolog(a)
    a("s_mov_b32 s36, 0")
    a(f"s_mov_b32 s37, {2*SLOT}")
    a("s_mov_b32 s38, 32768")
    a(f"s_branch {name}_att0")
    a.raw(f"{name}_attstage:")
    a("s_waitcnt vmcnt(0)")
    a("s_barrier")
    a.raw(f"{name}_att0:")
    a("s_cmp_lg_u32 s36, 1")
    a(f"s_cbranch_scc1 {name}_noh")
    a("s_lshl_b32 s3, s2, 7")
    a(f"s_add_u32 s3, s3, {FL_H}")
    set_flag(a, name, "h", "s3")
    a.raw(f"{name}_noh:")
    a("s_add_u32 s39, s30, s37")
    a("s_cmp_lt_u32 s36, 6")
    a("s_cselect_b32 s10, 131072, 0")
    a("s_cselect_b32 s14, 131072, 0")
    a("s_cmp_lt_u32 s36, 2")
    a("s_cselect_b32 s63, s63, 0x7fff0000")
    groups = att_dma_ops()
    groups.append(["buffer_load_dwordx4 v[200:203], v13, s[68:71], s62 offen", "s_add_u32 s62, s62, 4096"])
    groups.append(["buffer_load_dwordx4 v[204:207], v13, s[56:59], s63 offen", "s_add_u32 s63, s63, 4096"])
    groups.append(["buffer_load_dword v12, v14, s[32:35], s55 offen sc0 sc1"])
    att_stage_body(a, groups)
    att_rotate(a)
    a("s_cmp_lt_u32 s36, 7")
    a(f"s_cbranch_scc1 {name}_attstage")
    st(a, "att6")
    a("s_waitcnt vmcnt(0)")
    a("s_barrier")
    check_or_spin(a, name, "h", 14, "s55", 12)
    q = VmQ()
    att_stage_body(a, p3_early_groups(q))
    st(a, "attloop")
    att_epilogue(a, q)
    p3_main(a, name, q, st)
    st(a, "p3main")
    p3_epilogue(a, q)
    a("s_waitcnt vmcnt(0)")
    st(a, "end"); st.real(a, 1)
    st.flush(a, 24, kid=0)
    a("s_waitcnt vmcnt(0)")
    a.raw(f"{name}_end:")
    a("s_endpgm")
    kernel_desc(a, name, 512, 256)
    return a
MAIN_LDS = 163840
```

```python
from genlib import *
from layout import *

STAGE = 13312
ACC0 = 48
def acc(u, t, r=0): return ACC0 + (u * 4 + t) * 4 + r
WF0 = 0
XF0 = 52

def gemm1_setup(a, name):
    a("s_load_dwordx2 s[4:5], s[0:1], 8")
    a("s_load_dwordx2 s[6:7], s[0:1], 32")
    a("s_load_dwordx2 s[28:29], s[0:1], 64")
    a("v_lshrrev_b32 v1, 6, v0")
    a("v_and_b32 v0, 63, v0")
    a("s_and_b32 s26, s2, 7")
    a("v_readfirstlane_b32 s24, v1")
    a("s_lshr_b32 s25, s2, 3")
    a("s_and_b32 s3, s25, 3")
    a("s_lshr_b32 s25, s25, 2")
    a("s_lshl_b32 s26, s26, 1")
    a("s_and_b32 s30, s3, 1")
    a("s_add_u32 s26, s26, s30")
    a("s_lshr_b32 s3, s3, 1")
    a("s_lshl_b32 s3, s3, 4")
    a("s_add_u32 s26, s26, s3")
    a("s_lshl_b32 s3, s25, 2")
    a("s_add_u32 s3, s3, s24")
    a("s_lshl_b32 s3, s3, 17")
    a("v_lshlrev_b32 v1, 4, v0")
    a("v_add_u32 v1, s3, v1")
    a("s_and_b32 s31, s26, 1")
    a("s_lshl_b32 s31, s31, 1")
    a("s_mul_i32 s32, s26, 224")
    a("s_lshl_b32 s33, s26, 6")
    def f_off(dst, cexpr_reg):
        a(f"v_mul_u32_u24 v12, 4682, v{cexpr_reg}")
        a("v_lshrrev_b32 v12, 16, v12")
        a("v_mul_u32_u24 v13, 14, v12")
        a(f"v_sub_u32 v13, v{cexpr_reg}, v13")
        a("v_add_u32 v13, s31, v13")
        a("v_subrev_u32 v14, 14, v13")
        a("v_cmp_le_u32 vcc, 14, v13")
        a("s_nop 1")
        a("v_cndmask_b32 v13, v13, v14, vcc")
        a("v_mul_u32_u24 v12, 7168, v12")
        a("v_lshl_add_u32 v12, v13, 4, v12")
        a(f"v_add_u32 v{dst}, s32, v12")
    def q_off(dst, creg):
        a(f"v_mul_u32_u24 v12, 5462, v{creg}")
        a("v_lshrrev_b32 v12, 16, v12")
        a("v_mul_u32_u24 v13, 12, v12")
        a(f"v_sub_u32 v13, v{creg}, v13")
        a("v_lshrrev_b32 v14, 1, v13")
        a("v_bfe_u32 v15, v12, 2, 1")
        a("v_xor_b32 v14, v14, v15")
        a("v_and_b32 v13, 1, v13")
        a("v_lshlrev_b32 v13, 4, v13")
        a("v_and_b32 v15, 1, v14")
        a("v_lshl_add_u32 v13, v15, 5, v13")
        a("v_lshrrev_b32 v14, 1, v14")
        a("v_lshl_add_u32 v13, v14, 11, v13")
        a("v_mul_u32_u24 v12, 6144, v12")
        a("v_add_u32 v12, v12, v13")
        a(f"v_add_u32 v{dst}, s33, v12")
    a("s_lshl_b32 s3, s24, 4")
    a("s_add_u32 s3, s3, 384")
    a("v_and_b32 v11, 15, v0")
    a("v_add_u32 v11, s3, v11")
    f_off(5, 11)
    a("s_cmp_lt_u32 s24, 2")
    a(f"s_cbranch_scc0 {name}_fsetup")
    a("s_mul_i32 s3, s24, 192")
    for n in range(3):
        a(f"v_add_u32 v11, s3, v0")
        if n: a(f"v_add_u32 v11, {64*n}, v11")
        q_off(2 + n, 11)
    a("s_mul_i32 s27, s24, 3072")
    a(f"s_mov_b32 s23, {32*6144}")
    a(f"s_branch {name}_setup2")
    a.raw(f"{name}_fsetup:")
    a("s_sub_u32 s3, s24, 2")
    a("s_mul_i32 s3, s3, 192")
    for n in range(3):
        a(f"v_add_u32 v11, s3, v0")
        if n: a(f"v_add_u32 v11, {64*n}, v11")
        f_off(2 + n, 11)
    a("s_sub_u32 s27, s24, 2")
    a("s_mul_i32 s27, s27, 3072")
    a("s_add_u32 s27, s27, 6144")
    a(f"s_mov_b32 s23, {32*7168}")
    a.raw(f"{name}_setup2:")
    a("s_lshl_b32 s30, s24, 8")
    a("s_add_u32 s30, s30, 12288")
    a("v_lshrrev_b32 v11, 2, v0")
    a("v_and_b32 v12, 3, v0")
    a("v_lshlrev_b32 v12, 3, v12")
    a("v_bfe_u32 v13, v0, 4, 1")
    a("v_lshlrev_b32 v13, 5, v13")
    a("v_mul_u32_u24 v14, 192, v11")
    a("v_add_u32 v14, v14, v12")
    a("v_add_u32 v6, v14, v13")
    a("v_sub_u32 v7, v14, v13")
    a("v_mul_u32_u24 v14, 224, v11")
    a("v_add_u32 v8, v14, v12")
    a(f"v_add_u32 v9, {4*STAGE}, v6")
    a(f"v_add_u32 v10, {4*STAGE}, v7")
    a(f"v_add_u32 v11, {4*STAGE}, v8")
    a("s_waitcnt lgkmcnt(0)")
    srd(a, 8, 28, 4 * MB, WS_XN)
    srd(a, 16, 6, D * F * 2)
    a("s_cmp_lt_u32 s24, 2")
    a("s_cselect_b32 s12, s4, s6")
    a("s_cselect_b32 s13, s5, s7")
    a(f"s_mov_b32 s3, {D*3*D*2}")
    a(f"s_cselect_b32 s14, s3, {D*F*2}")
    a("s_mov_b32 s15, 0x00020000")

def ldsread(a, u, slot):
    hi = slot >= 4
    so = (slot % 4) * STAGE
    for jj in range(2):
        dst = WF0 + 4 * u + 2 * jj
        if u < 6:
            base = (9 if hi else 6) + (u & 1)
            off = so + u * 32 + jj * 3072
        else:
            base = 11 if hi else 8
            off = so + 6144 + (u - 6) * 32 + jj * 3584
        yield f"ds_read_b64_tr_b16 a[{dst}:{dst+1}], v{base} offset:{off}"

def vmem_ops(stage_b, stage_a, NS, NA, do_a, do_b):
    ops = []
    if do_a:
        ia = stage_a % NA
        for t in range(4):
            r = XF0 + ia * 16 + 4 * t
            g = [f"buffer_load_dwordx4 a[{r}:{r+3}], v1, s[8:11], s20 offen offset:{t*1024}"]
            if t == 3: g.append("s_add_u32 s20, s20, 4096")
            ops.append(g)
    if do_b:
        so = (stage_b % NS) * STAGE
        for n in range(3):
            g = [f"s_add_u32 m0, s27, {so + n*1024}", "s_nop 0", f"buffer_load_dwordx4 v{2+n}, s[12:15], s21 offen lds"]
            if n == 2: g.append("s_add_u32 s21, s21, s23")
            ops.append(g)
        ops.append([f"s_add_u32 m0, s30, {so}", "s_mov_b64 exec, 0xffff", "buffer_load_dwordx4 v5, s[16:19], s22 offen lds",
                    "s_mov_b64 exec, -1", f"s_add_u32 s22, s22, {32*7168}"])
    return ops

def mfma(u, t, ia, first):
    d = acc(u, t)
    x = XF0 + ia * 16 + 4 * t
    w = WF0 + 4 * u
    c = "0" if first else f"v[{d}:{d+3}]"
    if u in (4, 5):
        return f"v_mfma_f32_16x16x32_bf16 v[{d}:{d+3}], a[{x}:{x+3}], a[{w}:{w+3}], {c}"
    return f"v_mfma_f32_16x16x32_bf16 v[{d}:{d+3}], a[{w}:{w+3}], a[{x}:{x+3}], {c}"

def interleave(a, mf, fill):
    for i, m in enumerate(mf):
        a(m)
        for ln in fill.get(i, []): a(ln)

def step(a, s, NS, DB, NA, nsteps, first=False, extra_b=0, var=""):
    DA = DB - 1
    do_b = (s + DB) < nsteps
    do_a = (s + DA) < nsteps
    n = 0
    for sp in range(s + 2 - DB, s):
        n += (4 if 0 <= sp + DA < nsteps else 0) + (4 if 0 <= sp + DB < nsteps else 0)
    a(f"s_waitcnt vmcnt({min(n,63)})")
    if "nobar" not in var: a("s_barrier")
    ops = vmem_ops(s + DB, s + DA, NS, NA, do_a, do_b)
    nxt = (s + 1) < nsteps
    mf = [mfma(u, t, s % NA, first) for u in range(13) for t in range(4)]
    fill = {}
    def put(g, lines):
        fill.setdefault(g, []).extend(lines)
    if nxt and "nolds" not in var:
        for u in range(13):
            rd = list(ldsread(a, u, (s + 1) % NS))
            g0 = 4 * u + 3
            put(min(g0, 51), [rd[0]])
            put(min(g0 + 1, 51), [rd[1]])
    free = [g for g in range(1, 52) if g % 4 in (1, 2)]
    gi = 0
    stride = 3
    if "novm" in var: ops = []
    for grp in ops:
        if any("exec" in x for x in grp):
            put(free[gi], [grp[0]]); put(free[gi + 1], grp[1:4]); put(free[gi + 2], grp[4:]); gi += 3
        else:
            g2 = [x for x in grp if x != "s_nop 0"]
            for k, x in enumerate(g2):
                put(free[gi + k], [x])
            gi += max(len(g2), 3) if len(ops) <= 8 else len(g2)
    w0 = "s_waitcnt lgkmcnt(8)"
    a(w0 if True else "")
    for i, m in enumerate(mf):
        if i == 32:
            a("s_waitcnt lgkmcnt(8)" if nxt else "s_waitcnt lgkmcnt(0)")
        a(m)
        for ln in fill.get(i, []): a(ln)

def gemm1_main(a, name, NS=8, DB=7, NA=8, nsteps=32, st=None, var=''):
    DA = DB - 1
    a("s_mov_b32 s20, 0")
    a("s_mov_b32 s21, 0")
    a("s_mov_b32 s22, 0")
    for sp in range(-DB, 0):
        ops = vmem_ops(sp + DB, sp + DA, NS, NA, sp + DA >= 0, True)
        for g in ops:
            for ln in g: a(ln)
    n = 0
    for sp in range(-DB + 1, 0):
        n += (4 if sp + DA >= 0 else 0) + 4
    a(f"s_waitcnt vmcnt({min(n,63)})")
    a("s_barrier")
    for u in range(13):
        for ln in ldsread(a, u, 0): a(ln)
        if u == 6: a("s_waitcnt lgkmcnt(4)")
    U = max(NS, NA)
    assert U % NS == 0 and U % NA == 0
    tail = U * ((DB + U - 1) // U)
    nloop = (nsteps - U - tail) // U
    a("s_waitcnt lgkmcnt(0)")
    if st: st(a, "prolog")
    for s in range(U):
        step(a, s, NS, DB, NA, nsteps, first=(s == 0), var=var)
    if st: st(a, "peel")
    if nloop > 0:
        a(f"s_mov_b32 s31, {nloop}")
        a.raw(f"{name}_loop:")
        for s in range(U, 2 * U):
            step(a, s, NS, DB, NA, nsteps, var=var)
        a("s_sub_u32 s31, s31, 1")
        a("s_cmp_lg_u32 s31, 0")
        a(f"s_cbranch_scc1 {name}_loop")
    if st: st(a, "loop")
    for s in range(U + nloop * U, nsteps):
        step(a, s, NS, DB, NA, nsteps, var=var)

def gemm1_epilogue(a, name, sc=""):
    srd(a, 8, 28, 4 * MB, WS_Q)
    srd(a, 12, 28, 4 * MB, WS_K)
    srd(a, 16, 28, 4 * MB, WS_V)
    srd(a, 20, 28, H_BYTES, WS_H)
    a("v_and_b32 v2, 15, v0")
    a("v_lshrrev_b32 v3, 4, v0")
    a("v_lshlrev_b32 v3, 9, v3")
    a("s_lshl_b32 s3, s25, 3")
    a("s_lshl_b32 s30, s24, 1")
    a("s_add_u32 s3, s3, s30")
    a("s_lshl_b32 s30, s26, 17")
    a("s_lshl_b32 s31, s3, 11")
    a("s_add_u32 s30, s30, s31")
    a("v_lshl_add_u32 v4, v2, 4, v3")
    a("v_add_u32 v4, s30, v4")
    a("v_and_b32 v5, 7, v2")
    a("v_lshrrev_b32 v6, 3, v2")
    a("v_lshl_add_u32 v5, v6, 4, v5")
    a("v_lshl_add_u32 v5, v5, 4, v3")
    a("v_add_u32 v5, s30, v5")
    a(f"s_mul_i32 s31, s3, {112*2048}")
    a("s_mul_i32 s32, s26, 7")
    a("s_add_u32 s32, s32, 1")
    a("s_lshr_b32 s32, s32, 1")
    a("s_lshl_b32 s33, s32, 11")
    a("s_add_u32 s31, s31, s33")
    a("v_lshl_add_u32 v6, v2, 4, v3")
    a("v_add_u32 v6, s31, v6")
    a("s_and_b32 s33, s26, 1")
    a("s_cmp_eq_u32 s33, 0")
    a("s_mov_b32 s39, 6144")
    a("s_cselect_b32 s33, s39, -2040")
    a("v_add_u32 v7, s33, v6")
    a(f"s_mov_b32 s34, {112*2048}")
    import struct, math
    qs = struct.unpack("<I", struct.pack("<f", math.log2(math.e) / math.sqrt(32.0)))[0]
    a(f"s_mov_b32 s35, {hex(qs)}")
    a("s_mov_b32 s36, 0xbfb8aa3b")
    a("s_nop 7")
    for t in range(4):
        for uu in range(2):
            for r in range(4):
                a(f"v_mul_f32 v{acc(uu,t,r)}, s35, v{acc(uu,t,r)}")
        for uu in range(2):
            a(f"v_cvt_pk_bf16_f32 v{16+2*uu}, v{acc(uu,t,0)}, v{acc(uu,t,1)}")
            a(f"v_cvt_pk_bf16_f32 v{17+2*uu}, v{acc(uu,t,2)}, v{acc(uu,t,3)}")
        a(f"buffer_store_dwordx4 v[16:19], v4, s[8:11], 0 offen offset:{(t>>1)*2048 + (t&1)*256} {sc}")
        a("s_nop 1")
    for t in range(4):
        b = 20 + 4 * (t & 1)
        for uu in range(2):
            a(f"v_cvt_pk_bf16_f32 v{b+2*uu}, v{acc(2+uu,t,0)}, v{acc(2+uu,t,1)}")
            a(f"v_cvt_pk_bf16_f32 v{b+1+2*uu}, v{acc(2+uu,t,2)}, v{acc(2+uu,t,3)}")
        a(f"buffer_store_dwordx4 v[{b}:{b+3}], v5, s[12:15], 0 offen offset:{(t>>1)*2048 + (t&1)*128} {sc}")
    for bb in range(2):
        for td in range(2):
            b = 28 + 4 * td
            for tt in range(2):
                t = 2 * bb + tt
                a(f"v_cvt_pk_bf16_f32 v{b+2*tt}, v{acc(4+td,t,0)}, v{acc(4+td,t,1)}")
                a(f"v_cvt_pk_bf16_f32 v{b+1+2*tt}, v{acc(4+td,t,2)}, v{acc(4+td,t,3)}")
            a(f"buffer_store_dwordx4 v[{b}:{b+3}], v4, s[16:19], 0 offen offset:{bb*2048 + td*256} {sc}")
    def silu4(src, tmp):
        for r in range(4): a(f"v_mul_f32 v{tmp+r}, s36, v{src+r}")
        for r in range(4): a(f"v_exp_f32 v{tmp+r}, v{tmp+r}")
        for r in range(4): a(f"v_add_f32 v{tmp+r}, 1.0, v{tmp+r}")
        for r in range(4): a(f"v_rcp_f32 v{tmp+r}, v{tmp+r}")
        for r in range(4): a(f"v_mul_f32 v{src+r}, v{src+r}, v{tmp+r}")
    k = 0
    for t in range(4):
        so = "0" if t < 2 else "s34"
        for p in range(0, 6, 2):
            b = 16 + 4 * (k & 1); k += 1
            for q in range(2):
                silu4(acc(6 + p + q, t), 36)
                a(f"v_cvt_pk_bf16_f32 v{b+2*q}, v{acc(6+p+q,t,0)}, v{acc(6+p+q,t,1)}")
                a(f"v_cvt_pk_bf16_f32 v{b+1+2*q}, v{acc(6+p+q,t,2)}, v{acc(6+p+q,t,3)}")
            off = (p // 2) * 2048 + (t & 1) * 256
            if off >= 4096:
                sreg = "s37" if t < 2 else "s38"
                a(f"buffer_store_dwordx4 v[{b}:{b+3}], v6, s[20:23], {sreg} offen offset:{off-4096} {sc}")
            else:
                a(f"buffer_store_dwordx4 v[{b}:{b+3}], v6, s[20:23], {so} offen offset:{off} {sc}")
        silu4(acc(12, t), 36)
        b = 24 + 2 * (t & 1)
        a(f"v_cvt_pk_bf16_f32 v{b}, v{acc(12,t,0)}, v{acc(12,t,1)}")
        a(f"v_cvt_pk_bf16_f32 v{b+1}, v{acc(12,t,2)}, v{acc(12,t,3)}")
        a(f"buffer_store_dwordx2 v[{b}:{b+1}], v7, s[20:23], {so} offen offset:{(t&1)*256} {sc}")

def gen_gemm1(name="gemm1_kernel", NS=8, DB=7, NA=8, sc="", stamps=False, var=""):
    a = Asm()
    st = Stamps(stamps)
    kernel_header(a, name)
    a("s_cmp_ge_u32 s2, 256")
    a(f"s_cbranch_scc1 {name}_end")
    st.real(a, 0)
    st(a, "start")
    gemm1_setup(a, name)
    st(a, "setup")
    gemm1_main(a, name, NS, DB, NA, st=st, var=var)
    st(a, "main")
    a("s_mov_b32 s37, 4096")
    a(f"s_mov_b32 s38, {4096 + 112*2048}")
    gemm1_epilogue(a, name, sc)
    st(a, "epi")
    a("s_waitcnt vmcnt(0)")
    st(a, "drain")
    st.real(a, 1)
    st.flush(a, 24)
    a("s_waitcnt vmcnt(0)")
    a.raw(f"{name}_end:")
    a("s_endpgm")
    kernel_desc(a, name, 512, 256)
    return a
```

```python
from genlib import *
from layout import *

def prefetch(a, ptr_off, nbytes, nwg, nthreads, dst0, sbase, tag, voff='v79'):
    per_wg = nbytes // nwg
    rounds = (per_wg + nthreads * 16 - 1) // (nthreads * 16)
    a(f"s_load_dwordx2 s[{sbase}:{sbase+1}], s[0:1], {ptr_off}")
    a("s_waitcnt lgkmcnt(0)")
    a(f"s_mov_b32 s{sbase+2}, {nbytes}")
    a(f"s_mov_b32 s{sbase+3}, 0x00020000")
    a(f"s_mul_i32 s{sbase+4}, s2, {per_wg}")
    for r in range(rounds):
        d = dst0 + 4 * (r % 4)
        a(f"buffer_load_dwordx4 v[{d}:{d+3}], {voff}, s[{sbase}:{sbase+3}], s{sbase+4} offen")
        if r < rounds - 1: a(f"s_add_u32 s{sbase+4}, s{sbase+4}, {nthreads*16}")

def gen_ln(name="ln_kernel", pf=True):
    a = Asm()
    kernel_header(a, name)
    a("s_cmp_ge_u32 s2, 256")
    a(f"s_cbranch_scc1 {name}_end")
    a("v_lshlrev_b32 v79, 4, v0")
    a("s_cmp_ge_u32 s2, 128")
    a(f"s_cbranch_scc0 {name}_ln")
    if pf:
        prefetch(a, 8, D * 3 * D * 2, 256, 512, 80, 32, "a")
        prefetch(a, 32, D * F * 2, 256, 512, 80, 40, "b")
    a("s_load_dwordx2 s[6:7], s[0:1], 64")
    a("s_waitcnt lgkmcnt(0)")
    srd(a, 12, 6, 131072, WS_FLAGS)
    a("s_sub_u32 s3, s2, 128")
    a("s_lshl_b32 s3, s3, 10")
    a("v_mov_b32 v8, 0")
    a("v_mov_b32 v9, 0")
    a("v_mov_b32 v10, 0")
    a("v_mov_b32 v11, 0")
    a("v_cmp_gt_u32 vcc, 64, v0")
    a("s_and_saveexec_b64 s[16:17], vcc")
    a(f"s_cbranch_execz {name}_nz")
    a("buffer_store_dwordx4 v[8:11], v79, s[12:15], s3 offen")
    a.raw(f"{name}_nz:")
    a("s_mov_b64 exec, s[16:17]")
    a(f"s_branch {name}_fin")
    a.raw(f"{name}_ln:")
    a("s_load_dwordx2 s[4:5], s[0:1], 0")
    a("s_load_dwordx2 s[6:7], s[0:1], 64")
    a("v_and_b32 v1, 63, v0")
    a("v_lshrrev_b32 v2, 6, v0")
    a("v_and_b32 v3, 15, v1")
    a("v_lshrrev_b32 v4, 4, v1")
    a("s_lshl_b32 s3, s2, 4")
    a("v_add_u32 v5, s3, v3")
    a("v_lshlrev_b32 v5, 11, v5")
    a("v_lshl_add_u32 v5, v2, 8, v5")
    a("v_lshl_add_u32 v5, v4, 3, v5")
    a("s_lshr_b32 s16, s2, 2")
    a("s_lshl_b32 s16, s16, 17")
    a("s_and_b32 s17, s2, 3")
    a("s_lshl_b32 s17, s17, 10")
    a("s_add_u32 s16, s16, s17")
    a("v_lshlrev_b32 v6, 14, v2")
    a("v_lshl_add_u32 v6, v1, 4, v6")
    a("v_add_u32 v6, s16, v6")
    a("v_mul_u32_u24 v8, 48, v3")
    a("v_lshl_add_u32 v7, v2, 2, v8")
    a("s_waitcnt lgkmcnt(0)")
    srd(a, 8, 4, S * D * 2)
    srd(a, 12, 6, 4 * MB, WS_XN)
    for i in range(4):
        for jj in range(2):
            r = 16 + 4 * i + 2 * jj
            a(f"buffer_load_dwordx2 v[{r}:{r+1}], v5, s[8:11], 0 offen offset:{i*64+jj*32}")
    npf = 0
    if pf:
        prefetch(a, 8, D * 3 * D * 2, 256, 512, 80, 32, "a")
        prefetch(a, 32, D * F * 2, 256, 512, 80, 40, "b")
        npf = 7
    a("s_mov_b32 s20, 4096")
    a("s_mov_b32 s21, 8192")
    a("s_mov_b32 s22, 12288")
    a("s_mov_b32 s23, 0xffff0000")
    a(f"s_waitcnt vmcnt({npf})")
    for k in range(16):
        a(f"v_lshlrev_b32 v{32+2*k}, 16, v{16+k}")
        a(f"v_and_b32 v{33+2*k}, s23, v{16+k}")
    def wave_reduce_and_share(src, slot):
        a(f"v_mov_b32 v10, v{src}")
        a("s_nop 1")
        a(f"v_permlane32_swap_b32 v{src}, v10")
        a("s_nop 1")
        a(f"v_add_f32 v{src}, v{src}, v10")
        a(f"v_mov_b32 v10, v{src}")
        a("s_nop 1")
        a(f"v_permlane16_swap_b32 v{src}, v10")
        a("s_nop 1")
        a(f"v_add_f32 v{src}, v{src}, v10")
        a(f"ds_write_b32 v7, v{src} offset:{slot}")
        a("s_waitcnt lgkmcnt(0)")
        a("s_barrier")
        a(f"ds_read_b128 v[64:67], v8 offset:{slot}")
        a(f"ds_read_b128 v[68:71], v8 offset:{slot+16}")
        a("s_waitcnt lgkmcnt(0)")
        a("v_add_f32 v64, v64, v65")
        a("v_add_f32 v66, v66, v67")
        a("v_add_f32 v68, v68, v69")
        a("v_add_f32 v70, v70, v71")
        a("v_add_f32 v64, v64, v66")
        a("v_add_f32 v68, v68, v70")
        a("v_add_f32 v9, v64, v68")
    for k in range(4):
        a(f"v_add_f32 v{72+k}, v{32+k}, v{36+k}")
    for k in range(8, 32):
        a(f"v_add_f32 v{72+(k%4)}, v{72+(k%4)}, v{32+k}")
    a("v_add_f32 v72, v72, v73")
    a("v_add_f32 v74, v74, v75")
    a("v_add_f32 v72, v72, v74")
    wave_reduce_and_share(72, 0)
    a("v_mul_f32 v11, 0x3a800000, v9")
    for k in range(4):
        a(f"v_sub_f32 v76, v{32+k}, v11")
        a(f"v_mul_f32 v{72+k}, v76, v76")
    for k in range(4, 32):
        a(f"v_sub_f32 v76, v{32+k}, v11")
        a(f"v_fmac_f32 v{72+(k%4)}, v76, v76")
    a("v_add_f32 v72, v72, v73")
    a("v_add_f32 v74, v74, v75")
    a("v_add_f32 v72, v72, v74")
    wave_reduce_and_share(72, 1024)
    a("v_mul_f32 v12, 0x3a800000, v9")
    a("v_cvt_pk_bf16_f32 v13, v11, v12")
    a("s_nop 0")
    a("v_lshlrev_b32 v11, 16, v13")
    a("v_and_b32 v12, s23, v13")
    a("v_add_f32 v12, 0x3727c5ac, v12")
    a("v_cvt_pk_bf16_f32 v12, v12, v12")
    a("s_nop 0")
    a("v_and_b32 v12, s23, v12")
    a("v_sqrt_f32 v12, v12")
    a("s_nop 0")
    a("v_cvt_pk_bf16_f32 v12, v12, v12")
    a("s_nop 0")
    a("v_and_b32 v12, s23, v12")
    a("v_rcp_f32 v14, v12")
    a("s_nop 0")
    for k in range(16):
        x0, x1 = 32 + 2 * k, 33 + 2 * k
        a(f"v_sub_f32 v{x0}, v{x0}, v11")
        a(f"v_sub_f32 v{x1}, v{x1}, v11")
        a(f"v_cvt_pk_bf16_f32 v76, v{x0}, v{x1}")
        a("s_nop 0")
        a(f"v_lshlrev_b32 v{x0}, 16, v76")
        a(f"v_and_b32 v{x1}, s23, v76")
        a(f"v_mul_f32 v77, v{x0}, v14")
        a(f"v_mul_f32 v78, v{x1}, v14")
        a(f"v_fma_f32 v{x0}, -v77, v12, v{x0}")
        a(f"v_fma_f32 v{x1}, -v78, v12, v{x1}")
        a(f"v_fmac_f32 v77, v{x0}, v14")
        a(f"v_fmac_f32 v78, v{x1}, v14")
        a(f"v_cvt_pk_bf16_f32 v{16+k}, v77, v78")
    so = ["0", "s20", "s21", "s22"]
    a("s_nop 1")
    for i in range(4):
        a(f"buffer_store_dwordx4 v[{16+4*i}:{19+4*i}], v6, s[12:15], {so[i]} offen")
    a.raw(f"{name}_fin:")
    a("s_waitcnt vmcnt(0)")
    a.raw(f"{name}_end:")
    a("s_endpgm")
    kernel_desc(a, name, 96, 96, 64)
    return a
```

```python
from build import *
from k_ln import *
from k_fused import gen_main, MAIN_LDS
import sys
stamps = len(sys.argv) > 1 and sys.argv[1] == "st"
out = sys.argv[2] if len(sys.argv) > 2 else "t_fused"
final = None if stamps else "parallel_sum__softmax_full_mha__dense_activation_silu__prompt.s"
m = gen_main(stamps=stamps)
build([("ln_kernel", gen_ln(), 256, 512, 2048, 96),
       ("main_kernel", m, 256, 256, MAIN_LDS, 512)], out, final)
```
